```python
import torch

def _softmax(x, axis=-1):
    return torch.softmax(x, dim=axis)
def _gelu(x):
    return torch.nn.functional.gelu(x, approximate="tanh")
def _silu(x):
    return torch.nn.functional.silu(x)
def _sigmoid(x):
    return torch.sigmoid(x)
def _layernorm(x, axis=-1, eps=1e-5):
    m = x.mean(dim=axis, keepdim=True)
    v = x.var(dim=axis, keepdim=True, unbiased=False)
    return (x - m) / torch.sqrt(v + eps)
def _scatter_add(tgt, idx, src, axis=0):
    return tgt.clone().index_add_(axis, idx, src)
def _segment_sum(src, seg, n):
    out = torch.zeros((n,) + src.shape[1:], dtype=src.dtype)
    return out.index_add_(0, seg, src)
def _pad(x, pw):
    flat = tuple(v for pair in reversed(pw) for v in pair)
    return torch.nn.functional.pad(x, flat)

kernel_name = 'interleave_layers__ssm_conv_s4d__glu_gated_glu__prompt'

def setup_inputs():

    _w = (lambda a: (lambda t: t.to(torch.bfloat16) if t.is_floating_point() else t)(torch.as_tensor(a)))
    def _A_setup():
        Bsz, L, D, N = 1, 2048, 448, 256
        return {
            "u": _w((lambda *s: torch.randn(*s, dtype=torch.bfloat16) * 0.05)(Bsz, L, D)),
            "log_A_real": _w((lambda *s: torch.randn(*s, dtype=torch.bfloat16) * 3.2)(D, N) * 0.5),
            "A_imag": _w((lambda *s: torch.randn(*s, dtype=torch.bfloat16) * 0.1)(D, N) * 3.14),
            "C_real": _w((lambda *s: torch.randn(*s, dtype=torch.bfloat16) * 0.1)(D, N) / N ** 0.5),
            "C_imag": _w((lambda *s: torch.randn(*s, dtype=torch.bfloat16) * 0.1)(D, N) / N ** 0.5),
            "log_dt": _w((lambda *s: torch.randn(*s, dtype=torch.bfloat16) * 0.1)(D) * 0.5 - 4.0),
            "D_skip": _w((lambda *s: torch.randn(*s, dtype=torch.bfloat16) * 0.1)(D)),
        }
    _A_in = _A_setup()

    def _B_setup():
        B, S, D, F = 1, 2048, 448, 1792
        return {
            "x": _w((lambda *s: torch.randn(*s, dtype=torch.bfloat16) * 0.05)(B, S, D)),
            "w_gate": _w((lambda *s: torch.randn(*s, dtype=torch.bfloat16) * 0.05)(D, F)),
            "w_up": _w((lambda *s: torch.randn(*s, dtype=torch.bfloat16) * 0.05)(D, F)),
            "w_down": _w((lambda *s: torch.randn(*s, dtype=torch.bfloat16) * 0.05)(F, D)),
        }
    _B_in = _B_setup()

    return {
        "A_u": _A_in["u"],
        "A_log_A_real": _A_in["log_A_real"],
        "A_A_imag": _A_in["A_imag"],
        "A_C_real": _A_in["C_real"],
        "A_C_imag": _A_in["C_imag"],
        "A_log_dt": _A_in["log_dt"],
        "A_D_skip": _A_in["D_skip"],
        "B_x": _B_in["x"],
        "B_w_gate": _B_in["w_gate"],
        "B_w_up": _B_in["w_up"],
        "B_w_down": _B_in["w_down"],
    }

def reference(A_u, A_log_A_real, A_A_imag, A_C_real, A_C_imag, A_log_dt, A_D_skip, B_x, B_w_gate, B_w_up, B_w_down):
    def _A_ref(u, log_A_real, A_imag, C_real, C_imag, log_dt, D_skip):
        L = u.shape[1]
        dt = torch.exp(log_dt)
        A = -torch.exp(log_A_real) + 1j * A_imag
        C = (C_real + 1j * C_imag) * dt[:, None]
        pos = (lambda x, dt: x.to(dt))(torch.arange(L), log_dt.dtype)
        P = torch.exp((A * dt[:, None])[:, :, None] * pos[None, None, :])
        K = 2.0 * torch.einsum("dn,dnl->dl", C, P).real
        L2 = 2 * L
        u_t = (lambda x, *d: x.permute(*d))(u, 0, 2, 1)
        Kf = (lambda x, *a, **k: torch.fft.rfft(x.float(), *a, **k))(K, L2)
        Uf = (lambda x, *a, **k: torch.fft.rfft(x.float(), *a, **k))(u_t, L2)
        y = (lambda x, *a, **k: torch.fft.irfft(x, *a, **k).to(torch.bfloat16))(Uf * Kf[None, :, :], L2)[:, :, :L]
        y = (lambda x, *d: x.permute(*d))(y, 0, 2, 1)
        return y + u * D_skip[None, None, :]

    def _B_ref(x, w_gate, w_up, w_down):
        g = torch.einsum("bsd,df->bsf", x, w_gate)
        u = torch.einsum("bsd,df->bsf", x, w_up)
        h = _sigmoid(g) * u
        return torch.einsum("bsf,fd->bsd", h, w_down)

    x = A_u
    x = x + _A_ref(_layernorm(x, axis=-1), A_log_A_real, A_A_imag, A_C_real, A_C_imag, A_log_dt, A_D_skip)
    x = x + _B_ref(_layernorm(x, axis=-1), B_w_gate, B_w_up, B_w_down)
    x = x + _A_ref(_layernorm(x, axis=-1), A_log_A_real, A_A_imag, A_C_real, A_C_imag, A_log_dt, A_D_skip)
    x = x + _B_ref(_layernorm(x, axis=-1), B_w_gate, B_w_up, B_w_down)
    return x
```

```python
import re

TRANS = ('v_exp_f32', 'v_log_f32', 'v_rcp_f32', 'v_rsq_f32', 'v_sqrt_f32', 'v_sin_f32', 'v_cos_f32')
NO_DST_SALU = ('s_cmp', 's_cbranch', 's_branch', 's_waitcnt', 's_barrier', 's_nop', 's_endpgm', 's_setprio',
               's_sleep', 's_bitcmp', 's_setreg', 's_sethalt')


def v(i, n=1):
    return f'v{i}' if n == 1 else f'v[{i}:{i + n - 1}]'


def a(i, n=1):
    return f'a{i}' if n == 1 else f'a[{i}:{i + n - 1}]'


def s(i, n=1):
    return f's{i}' if n == 1 else f's[{i}:{i + n - 1}]'


def regs_of(tok):
    tok = tok.strip()
    tok = tok.lstrip('-').strip('|')
    if tok.startswith('neg(') or tok.startswith('abs('):
        tok = tok[4:-1]
    m = re.match(r'^([vas])(\d+)$', tok)
    if m:
        return [m.group(1) + m.group(2)]
    m = re.match(r'^([vas])\[(\d+):(\d+)\]$', tok)
    if m:
        return [m.group(1) + str(i) for i in range(int(m.group(2)), int(m.group(3)) + 1)]
    if tok in ('vcc', 'vcc_lo', 'vcc_hi'):
        return ['vcc']
    if tok in ('exec', 'exec_lo', 'exec_hi'):
        return ['exec']
    if tok == 'm0':
        return ['m0']
    return []


class Ins:
    __slots__ = ('op', 'text', 'cls', 'rd', 'wr', 'A', 'B', 'C', 'passes', 'dpp', 'trans', 'dot', 'wide', 'data',
                 'lds_dma', 'states', 'blk', 'tag', 'selw', 'perm', 'rl', 'lanesel', 'smem')

    def __init__(self, text):
        self.text = text
        t = text.split(';')[0].strip()
        parts = t.split(None, 1)
        op = parts[0]
        rest = parts[1] if len(parts) > 1 else ''
        self.op = op
        mods = rest
        rest2 = re.sub(r'\w+:\[[^\]]*\]', '', rest)
        fields = [f.strip() for f in rest2.split(',')] if rest2.strip() else []
        ops = [f.split()[0] if f else '' for f in fields]
        R = [regs_of(o) for o in ops]
        self.rd = set()
        self.wr = set()
        self.A = self.B = self.C = set()
        self.passes = 0
        self.dpp = False
        self.trans = False
        self.dot = False
        self.wide = False
        self.data = set()
        self.lds_dma = False
        self.states = 1
        self.blk = None
        self.tag = None
        self.selw = False
        self.perm = False
        self.rl = False
        self.lanesel = set()
        self.smem = False
        base = re.sub(r'_(e32|e64|sdwa|dpp)$', '', op)

        def rd(*idx):
            for i in idx:
                if i < len(R):
                    self.rd.update(R[i])

        def wr(*idx):
            for i in idx:
                if i < len(R):
                    self.wr.update(R[i])

        n = len(R)
        if op.startswith('v_mfma'):
            self.cls = 'mfma'
            wr(0)
            rd(1, 2, 3)
            self.A = set(R[1]); self.B = set(R[2]); self.C = set(R[3])
            self.passes = 8 if '32x32x16' in op else 4 if '16x16x32' in op else None
            assert self.passes, op
        elif op.startswith('v_'):
            self.cls = 'valu'
            self.trans = base in TRANS
            self.dot = base.startswith('v_dot')
            self.dpp = ('_dpp' in op) or any(k in mods for k in ('quad_perm', 'row_shr', 'row_shl', 'row_ror', 'row_mirror',
                                                               'row_half_mirror', 'row_bcast', 'row_newbcast', 'wave_'))
            if base.startswith('v_cmp'):
                wr(0); rd(*range(1, n))
                if base.startswith('v_cmpx'):
                    raise ValueError('no cmpx')
            elif base in ('v_readfirstlane_b32',):
                wr(0); rd(1); self.rl = True
            elif base == 'v_readlane_b32':
                wr(0); rd(1, 2); self.rl = True; self.lanesel = set(R[2])
            elif base == 'v_writelane_b32':
                wr(0); rd(0, 1, 2); self.lanesel = set(R[2])
            elif base in ('v_add_co_u32', 'v_sub_co_u32', 'v_subrev_co_u32', 'v_addc_co_u32', 'v_subb_co_u32'):
                wr(0, 1); rd(*range(2, n))
            elif base.startswith('v_permlane') or base == 'v_swap_b32':
                wr(0, 1); rd(0, 1); self.perm = base.startswith('v_permlane')
            else:
                wr(0); rd(*range(1, n))
                if base.startswith(('v_fmac', 'v_mac', 'v_dot2c', 'v_pk_fmac')) or self.dpp or 'UNUSED_PRESERVE' in mods:
                    rd(0)
                if 'dst_sel:' in mods and 'dst_sel:DWORD' not in mods:
                    self.selw = True
            self.rd.add('exec')
        elif op.startswith('ds_'):
            self.cls = 'ds'
            if op.startswith(('ds_read', 'ds_bpermute', 'ds_permute', 'ds_swizzle')):
                wr(0); rd(*range(1, n))
            else:
                rd(*range(0, n))
            self.rd.add('exec')
        elif op.startswith('buffer_'):
            self.cls = 'vm'
            if op.startswith('buffer_load'):
                if re.search(r'\blds\b', mods):
                    self.lds_dma = True
                    rd(*range(0, n)); self.rd.add('m0')
                else:
                    wr(0); rd(*range(1, n))
            elif op.startswith(('buffer_store', 'buffer_atomic')):
                rd(*range(0, n)); self.data = set(R[0])
                self.wide = 'x3' in op or 'x4' in op
            else:
                pass
            self.rd.add('exec')
        elif op.startswith('global_'):
            self.cls = 'vm'
            if op.startswith('global_load_lds'):
                self.lds_dma = True
                rd(*range(0, n)); self.rd.add('m0')
            elif op.startswith('global_load'):
                wr(0); rd(*range(1, n))
            elif op.startswith('global_atomic') and re.search(r'\bsc0\b', mods):
                wr(0); rd(*range(1, n))
            else:
                rd(*range(0, n)); self.data = set(R[1])
                self.wide = 'x3' in op or 'x4' in op
            self.rd.add('exec')
        elif op.startswith('s_load') or op.startswith('s_memtime') or op.startswith('s_memrealtime'):
            self.cls = 'smem'
            wr(0); rd(*range(1, n))
        elif op.startswith('s_'):
            self.cls = 'salu'
            if op == 's_nop':
                self.states = int(ops[0], 0) + 1
            elif op.startswith(NO_DST_SALU):
                rd(*range(0, n))
            else:
                wr(0); rd(*range(1, n))
                if 'saveexec' in op:
                    self.wr.add('exec'); self.rd.add('exec')
        else:
            raise ValueError('unknown op ' + text)


def is_vec(r):
    return r[0] in 'va' and r != 'vcc'


def is_sgpr(r):
    return r == 'vcc' or (r[0] == 's')


def need(p, c):
    n = 0
    if p.cls == 'valu':
        vw = {r for r in p.wr if is_vec(r)}
        sw = {r for r in p.wr if is_sgpr(r)}
        if vw:
            hit = vw & c.rd
            if hit:
                if c.cls == 'valu':
                    if c.dpp: n = max(n, 2)
                    if c.perm: n = max(n, 2)
                    if c.rl: n = max(n, 1)
                    if p.selw: n = max(n, 1)
                    if p.trans and not c.trans: n = max(n, 1)
                    if p.trans and c.trans: n = max(n, 1)
                if c.cls == 'mfma': n = max(n, 2)
            if p.dot:
                if (vw & (c.rd | c.wr)):
                    if c.cls == 'valu' and c.dot and c.op == p.op:
                        srcs = c.rd - c.wr
                        if c.op.startswith('v_dot2c'):
                            if vw & srcs: n = max(n, 3)
                        else:
                            n = max(n, 0 if getattr(c, 'tag', None) == 'dotchain' else 3)
                    else:
                        n = max(n, 3)
            if p.selw and (vw & c.wr) and c.cls == 'valu': n = max(n, 1)
        if sw:
            hit = sw & c.rd
            if hit:
                if c.cls == 'vm': n = max(n, 5)
                if c.cls == 'valu':
                    n = max(n, 2)
                    if sw & c.lanesel: n = max(n, 4)
                if c.cls == 'mfma': n = max(n, 2)
    if p.cls == 'mfma':
        D = p.wr
        big = 12 if p.passes == 8 else 8
        if c.cls == 'mfma':
            if D & (c.A | c.B): n = max(n, big)
            if D & c.C:
                if not (c.C == D and c.passes == p.passes):
                    n = max(n, 10 if p.passes == 8 else 6)
            elif (D & c.wr) and c.passes != p.passes:
                n = max(n, big)
        else:
            if D & (c.rd | c.wr): n = max(n, big)
            if c.cls == 'valu' and (p.C & c.wr): n = max(n, 7 if p.passes == 8 else 3)
    if p.cls == 'vm' and p.wide and (p.data & c.wr):
        n = max(n, 2 if c.cls == 'valu' else 1)
    if p.cls == 'salu' and 'm0' in p.wr and c.lds_dma:
        n = max(n, 1)
    return n


WINDOW = 24


class Asm:
    def __init__(self):
        self.lines = []
        self.reset_state()
        self.nins = 0
        self.labels = {}
        self.uid = 0
        self.stats = {'nop': 0, 'wait': 0}

    def reset_state(self):
        self.hist = [[]]
        self.vmq = []
        self.lgq = []
        self.blk = None

    def _push(self, ins):
        self.lines.append('    ' + ins.text)
        self.nins += 1
        for h in self.hist:
            h.append(ins)
            tot = 0
            for k in range(len(h) - 1, -1, -1):
                tot += h[k].states
                if tot > WINDOW:
                    del h[:k]
                    break
        if len(self.hist) > 1:
            uniq = []
            for h in self.hist:
                if not any(len(h) == len(u) and all(x is y for x, y in zip(h, u)) for u in uniq):
                    uniq.append(h)
            self.hist = uniq

    def _nops_needed(self, ins, hists=None):
        worst = 0
        for h in (hists or self.hist):
            d = 0
            for p in reversed(h):
                nd = need(p, ins)
                if nd > d:
                    worst = max(worst, nd - d)
                d += p.states
                if d > WINDOW: break
        return worst

    def _after(self, q, i):
        x = q[i]
        return sum(1 for z in q[i + 1:] if z.blk is None or z.blk == x.blk)

    def _waits(self, ins):
        touched = ins.rd | ins.wr
        vm = None
        for i, x in enumerate(self.vmq):
            if x.wr & touched:
                n = self._after(self.vmq, i)
                vm = n if vm is None else min(vm, n)
        lg = None
        for i, x in enumerate(self.lgq):
            if x.wr & touched:
                n = 0 if any(z.smem for z in self.lgq) else self._after(self.lgq, i)
                lg = n if lg is None else min(lg, n)
        if vm is not None or lg is not None:
            self.wait(vm=vm, lg=lg)

    def wait(self, vm=None, lg=None):
        parts = []
        if vm is not None:
            vmc = min(vm, 63)
            parts.append(f'vmcnt({vmc})')
            self.vmq = [x for i, x in enumerate(self.vmq) if self._after(self.vmq, i) < vmc]
        if lg is not None:
            lgc = min(lg, 15)
            if any(z.smem for z in self.lgq): lgc = 0
            parts.append(f'lgkmcnt({lgc})')
            self.lgq = [x for i, x in enumerate(self.lgq) if self._after(self.lgq, i) < lgc]
        if parts:
            self._push(Ins('s_waitcnt ' + ' '.join(parts)))
            self.stats['wait'] += 1

    def wait_op(self, *hs):
        vm = lg = None
        for h in hs:
            if h in self.vmq:
                n = self._after(self.vmq, self.vmq.index(h)); vm = n if vm is None else min(vm, n)
            if h in self.lgq:
                n = self._after(self.lgq, self.lgq.index(h)); lg = n if lg is None else min(lg, n)
        self.wait(vm=vm, lg=lg)

    def wait_all(self, vm=True, lg=True):
        self.wait(vm=0 if vm and self.vmq else None, lg=0 if lg and self.lgq else None)

    def I(self, text, tag=None):
        ins = Ins(text)
        ins.tag = tag
        ins.blk = self.blk
        self._waits(ins)
        n = self._nops_needed(ins)
        while n > 0:
            k = min(n, 16)
            self._push(Ins(f's_nop {k - 1}'))
            self.stats['nop'] += 1
            n -= k
        self._push(ins)
        if ins.cls == 'vm':
            self.vmq.append(ins)
        elif ins.cls == 'ds':
            self.lgq.append(ins)
        elif ins.cls == 'smem':
            ins.smem = True
            self.lgq.append(ins)
        return ins

    def M(self, text):
        for ln in text.strip().split('\n'):
            ln = ln.strip()
            if ln and not ln.startswith(';'):
                self.I(ln)

    def comment(self, t):
        self.lines.append('    ; ' + t)

    def raw(self, t):
        self.lines.append(t)

    def newlabel(self, p='L'):
        self.uid += 1
        return f'{p}_{self.uid}'

    def barrier(self, vm_ops=(), lg=True):
        vm = None
        for h in vm_ops:
            if h in self.vmq:
                n = self._after(self.vmq, self.vmq.index(h)); vm = n if vm is None else min(vm, n)
        self.wait(vm=vm, lg=0 if (lg and self.lgq) else None)
        self.I('s_barrier')

    def skip_begin(self, branch):
        lab = self.newlabel('SKIP')
        self.I(f'{branch} {lab}')
        self.uid += 1
        st = (lab, [list(h) for h in self.hist], self.blk)
        assert self.blk is None
        self.blk = self.uid
        return st

    def skip_end(self, st):
        lab, hists, blk = st
        self.raw(f'{lab}:')
        self.blk = None
        self.hist = self.hist + hists

    def entry_label(self, lab):
        self.raw(f'{lab}:')
        self.reset_state()

    def loop_begin(self):
        lab = self.newlabel('LOOP')
        self.raw(f'{lab}:')
        st = dict(lab=lab, vmq=list(self.vmq), lgq=list(self.lgq), start=len(self.lines), body=[])
        self._loop = st
        self._orig_push = self._push
        def rec(ins, _o=self._push):
            st['body'].append(ins); _o(ins)
        self._push = rec
        return st

    def loop_end(self, st, branch, pre=()):
        for t in pre: self.I(t)
        self._push = self._orig_push

        def chk(q0, q1, name):
            for i, x in enumerate(q1):
                if not x.wr and not x.lds_dma: continue
                p1 = self._after(q1, i)
                ok = False
                for j, y in enumerate(q0):
                    if y.wr == x.wr and y.lds_dma == x.lds_dma and y.op == x.op and self._after(q0, j) <= p1:
                        if x.lds_dma and y.tag != x.tag: continue
                        ok = True
                assert ok, f'loop {name} state mismatch for {x.text}'
        chk(st['vmq'], self.vmq, 'vm')
        chk(st['lgq'], self.lgq, 'lg')
        br = Ins(f'{branch} {st["lab"]}')
        worst = 0
        hs = [list(h) + [br] for h in self.hist]
        tot = 0
        for ins in st['body']:
            worst = max(worst, self._nops_needed(ins, hs))
            for h in hs: h.append(ins)
            tot += ins.states
            if tot > WINDOW: break
        while worst > 0:
            k = min(worst, 16)
            self._push(Ins(f's_nop {k - 1}'))
            worst -= k
        self._push(br)

    def text(self):
        return '\n'.join(self.lines) + '\n'
```

```python
from asmdsl import *

NAME = 'interleave_layers__ssm_conv_s4d__glu_gated_glu__prompt'
L, D, F, NM = 2048, 448, 1792, 256
MB = 1 << 20
XT = [0, 2 * MB, 4 * MB, 6 * MB]
XT_BYTES = D * L * 2
ST1 = 8 * MB
ST3 = 8 * MB + 65536
ST_BYTES = 2 * L * 4
KS = 10 * MB
KS_STRIDE = 8320
KS_O = 4160
KS_BYTES = D * KS_STRIDE + 1024
W1P = 16 * MB
W1P_BYTES = 112 * 28 * 1024
W2P = 20 * MB
W2P_BYTES = 14 * 112 * 1024
HP = 24 * MB
HP_BYTES = 64 * 112 * 1024

KA = dict(u=0, lar=8, aim=16, cr=24, ci=32, ldt=40, dsk=48, wg=64, wu=72, wd=80, out=88, dbg=96, ws=104)


def srd_from_ptr(k, sr, ptr, nbytes, off=0):
    if off:
        k.I(f's_add_u32 {s(sr)}, {s(ptr)}, {off}')
        k.I(f's_addc_u32 {s(sr + 1)}, {s(ptr + 1)}, 0')
    else:
        k.I(f's_mov_b32 {s(sr)}, {s(ptr)}')
        k.I(f's_mov_b32 {s(sr + 1)}, {s(ptr + 1)}')
    k.I(f's_mov_b32 {s(sr + 2)}, {nbytes}')
    k.I(f's_mov_b32 {s(sr + 3)}, 0x00020000')


def kernel_header(k, label):
    k.raw(f'.globl {label}')
    k.raw('.p2align 8')
    k.raw(f'.type {label},@function')
    k.raw(f'{label}:')
    k.reset_state()


def kernel_desc(label, vgpr, accum, sgpr=102):
    return f""".amdhsa_kernel {label}
  .amdhsa_next_free_vgpr {vgpr}
  .amdhsa_next_free_sgpr {sgpr}
  .amdhsa_accum_offset {accum}
  .amdhsa_group_segment_fixed_size 0
  .amdhsa_kernarg_size 112
  .amdhsa_user_sgpr_count 2
  .amdhsa_user_sgpr_kernarg_segment_ptr 1
  .amdhsa_system_sgpr_workgroup_id_x 1
.end_amdhsa_kernel
"""


def f32hex(x):
    import struct
    return '0x%08x' % struct.unpack('<I', struct.pack('<f', x))[0]


def cmul(k, d, x, y, conj_none=True):
    k.I(f'v_pk_mul_f32 {v(d, 2)}, {v(x, 2)}, {v(y, 2)} op_sel:[0,0] op_sel_hi:[0,1]')
    k.I(f'v_pk_fma_f32 {v(d, 2)}, {v(x, 2)}, {v(y, 2)}, {v(d, 2)} op_sel:[1,1,0] op_sel_hi:[1,0,1] neg_lo:[1,0,0]')


import os as _os
STAMP = int(_os.environ.get('STAMP', 0))
STAMP_WG = int(_os.environ.get('STAMP_WG', 0))


def stamp_begin(k):
    if not STAMP: return
    k._nst = 0
    k.I('s_load_dwordx2 s[96:97], s[0:1], 96')
    k.I('s_memrealtime s[94:95]')
    stamp(k)


def stamp(k, wait=False):
    if not STAMP: return
    i = k._nst
    assert i < 14
    if wait: k.wait_all()
    k.I(f's_memtime s[{64 + 2 * i}:{65 + 2 * i}]')
    k._nst += 1


def stamp_end(k, vt=0):
    if not STAMP: return
    k.wait_all()
    stamp(k)
    k.I('s_memrealtime s[92:93]')
    k.wait_all()
    lab = k.newlabel('NOST')
    k.I(f's_cmp_lg_u32 s2, {STAMP_WG}')
    k.I(f's_cbranch_scc1 {lab}')
    k.I('s_cmp_lg_u32 s6, 0')
    k.I(f's_cbranch_scc1 {lab}')
    srd_from_ptr(k, 60, 96, 256)
    k.I(f'v_mov_b32 {v(vt + 1)}, 0')
    vals = [94, 92] + [64 + 2 * i for i in range(k._nst)]
    for n, sr in enumerate(vals):
        k.I(f'v_mov_b32 {v(vt)}, s{sr}')
        k.I(f'buffer_store_dword {v(vt)}, {v(vt + 1)}, s[60:63], 0 offen offset:{4 * n}')
    k.wait_all()
    k.raw(f'{lab}:')
    k.reset_state()
```

```python
import sys, os
sys.path.insert(0, os.path.dirname(__file__))
from asmdsl import *
from common import NAME, L, D, F, NM, MB, KA, f32hex, cmul, kernel_desc, kernel_header
import common

LOG2E = 1.4426950408889634
INV2PI = 0.15915494309189535
NWG = 256
NCW = 224
FL = 0
FLB = 0x20000
GEN = 0x40000
ST1 = 0x50000
ST3 = 0x60000
XT1, XT2, XT3 = 2 * MB, 4 * MB, 6 * MB
W1P = 8 * MB
W2P = 12 * MB
HP = [16 * MB, 24 * MB]
WS_USED = 32 * MB
KSL = 0
KS_STRIDE, KS_O = 8320, 4160
T0 = 17408
XRING, NXR = T0, 12
WRING, NWR_ = T0 + 12 * 4096, 23
LDS_TOTAL = 163840
assert WRING + NWR_ * 4096 <= LDS_TOTAL
WS = 20
P_U, P_LAR, P_AIM, P_CR, P_CI, P_LDT, P_DSK = 36, 38, 40, 42, 44, 46, 48
P_WG, P_WU, P_WD, P_OUT0 = 52, 54, 56, 58
P_OUT, S_DSK, S_GEN, TOK, FST, FPA, FPN, SPN, S_CP = 84, 86, 87, 88, 89, 90, 91, 92, 93
S_LB, S_DT = 94, 95
S_RB, S_FS = 96, 97
S_WP, S_WV, S_W1K, TOKB = 98, 99, 100, 101
VS = 248
VSTAMP = 255
SPIN_MAX = 30000
WIN = 7

STAMP = int(os.environ.get('STAMP', 0))
DBGF = int(os.environ.get('DBGF', 0))


class Stamps:
    def __init__(self, k):
        self.k = k; self.pend = []; self.n = 0; self.names = []

    def __call__(self, name, wait=False):
        if not STAMP: return
        k = self.k
        if wait: k.wait_all()
        if len(self.pend) == 10: self.flush()
        i = len(self.pend)
        k.I(f's_memtime s[{64 + 2 * i}:{65 + 2 * i}]')
        self.pend.append(self.n); self.names.append(name); self.n += 1

    def flush(self):
        if not STAMP or not self.pend: return
        k = self.k
        k.wait(lg=0)
        if not k.lgq: k.I('s_waitcnt lgkmcnt(0)')
        for i, n in enumerate(self.pend):
            assert n < 64
            k.I(f'v_writelane_b32 {v(VSTAMP)}, s{64 + 2 * i}, {n}')
        self.pend = []


def srd(k, sr, ptr, nbytes):
    k.I(f's_mov_b32 {s(sr)}, {s(ptr)}')
    k.I(f's_mov_b32 {s(sr + 1)}, {s(ptr + 1)}')
    k.I(f's_mov_b32 {s(sr + 2)}, {nbytes}')
    k.I(f's_mov_b32 {s(sr + 3)}, 0x00020000')


def emit_signal(k, p, first=False):
    k.I(f's_add_u32 {s(SPN)}, {s(TOK)}, {p}')
    k.I(f'v_mov_b32 {v(VS + 5)}, {s(SPN)}')
    k.I(f'v_lshlrev_b32 {v(VS + 4)}, 12, v2')
    k.I('s_mov_b32 exec_hi, 0')
    k.I(f'buffer_store_dword {v(VS + 5)}, {v(VS + 4)}, s[{WS}:{WS + 3}], {s(FST)} offen sc1')
    if first:
        k.I(f'v_mov_b32 {v(VS + 6)}, {s(TOKB)}')
        k.I(f's_add_u32 s3, {s(FST)}, {FLB}')
        k.I(f'buffer_store_dword {v(VS + 6)}, {v(VS + 4)}, s[{WS}:{WS + 3}], s3 offen sc1')
    k.I('s_mov_b32 exec_hi, -1')


def emit_poll(k, p, narrow=False, first=False):
    k.I(f's_add_u32 s3, {s(TOK)}, {p}')
    k.I(f'v_lshrrev_b32 {v(VS + 6)}, 1, v2')
    k.I(f'v_lshlrev_b32 {v(VS + 6)}, 7, {v(VS + 6)}')
    k.I(f'v_and_b32 {v(VS)}, 1, v2')
    k.I(f'v_lshl_add_u32 {v(VS + 6)}, {v(VS)}, 4, {v(VS + 6)}')
    k.I(f's_mov_b32 {s(SPN)}, {SPIN_MAX}')
    if narrow: k.I('s_mov_b64 exec, 15')
    if first: k.I(f's_add_u32 s8, {s(FPA)}, {FLB}')
    lp, dn = k.newlabel('POLL'), k.newlabel('PDONE')
    k.raw(lp + ':')
    k.I(f'buffer_load_dwordx4 {v(VS, 4)}, {v(VS + 6)}, s[{WS}:{WS + 3}], {s(FPN if narrow else FPA)} offen sc1')
    if first:
        k.I(f'buffer_load_dwordx4 {v(VS - 4, 4)}, {v(VS + 6)}, s[{WS}:{WS + 3}], s8 offen sc1')
    k.wait(vm=0)
    for i in range(4): k.I(f'v_subrev_u32 {v(VS + i)}, s3, {v(VS + i)}')
    k.I(f'v_max3_u32 {v(VS)}, {v(VS)}, {v(VS + 1)}, {v(VS + 2)}')
    if first:
        for i in range(4): k.I(f'v_xor_b32 {v(VS - 4 + i)}, {s(TOKB)}, {v(VS - 4 + i)}')
        k.I(f'v_or3_b32 {v(VS - 4)}, {v(VS - 4)}, {v(VS - 3)}, {v(VS - 2)}')
        k.I(f'v_or_b32 {v(VS - 4)}, {v(VS - 4)}, {v(VS - 1)}')
        k.I(f'v_cmp_ne_u32 vcc, 0, {v(VS - 4)}')
        k.I(f'v_cndmask_b32 {v(VS - 4)}, 0, -1, vcc')
        k.I(f'v_max_u32 {v(VS)}, {v(VS)}, {v(VS - 4)}')
    k.I(f'v_max_u32 {v(VS)}, {v(VS)}, {v(VS + 3)}')
    k.I(f'v_cmp_lt_u32 vcc, {WIN}, {v(VS)}')
    k.I('s_and_b64 vcc, vcc, exec')
    k.I(f's_cbranch_scc0 {dn}')
    k.I(f's_sub_u32 {s(SPN)}, {s(SPN)}, 1')
    k.I(f's_cmp_lg_u32 {s(SPN)}, 0')
    k.I(f's_cbranch_scc1 {lp}')
    if DBGF:
        k.I('s_cmp_eq_u32 s63, 0')
        k.I(f's_cselect_b32 s63, {p}, s63')
    k.raw(dn + ':')
    if narrow: k.I('s_mov_b64 exec, -1')


def wave0(k, fn):
    vq, lq = list(k.vmq), list(k.lgq)
    k.I('s_cmp_lg_u32 s6, 0')
    stt = k.skip_begin('s_cbranch_scc1')
    fn()
    k.skip_end(stt)
    k.vmq, k.lgq = vq, lq


def handoff(k, st, sig, waitp=None, narrow=False, first=False, name='', sigfirst=False, after_sig=None):
    k.wait_all()
    st(name + ':drained')
    if sig is not None: k.I('s_barrier')
    if after_sig is None:
        def body():
            if sig is not None: emit_signal(k, sig, sigfirst)
            if waitp is not None: emit_poll(k, waitp, narrow, first)
        wave0(k, body)
    else:
        if sig is not None: wave0(k, lambda: emit_signal(k, sig, sigfirst))
        after_sig()
        if waitp is not None: wave0(k, lambda: emit_poll(k, waitp, narrow, first))
    if waitp is not None: k.I('s_barrier')
    st(name + ':passed')
    st.flush()


class Rec:
    def __init__(self): self.l = []
    def I(self, t): self.l.append(t)
    def M(self, text):
        for ln in text.strip().split('\n'):
            ln = ln.strip()
            if ln: self.l.append(ln)


def interleave(k, *lists):
    n = max(len(x) for x in lists)
    for i in range(n):
        for x in lists:
            if i < len(x): k.I(x[i])


def prologue(k, label):
    k.M(f'''
    s_cmp_ge_u32 s2, {NWG}
    s_cbranch_scc0 {label}_go
    s_endpgm
    ''')
    k.raw(f'{label}_go:')
    k.M(f'''
    s_load_dwordx16 s[36:51], s[0:1], 0
    s_load_dwordx8 s[52:59], s[0:1], 64
    s_load_dwordx2 s[4:5], s[0:1], {KA['ws']}
    v_lshrrev_b32 v1, 6, v0
    v_and_b32 v2, 63, v0
    s_and_b32 s7, s2, 7
    s_lshr_b32 s8, s2, 3
    v_readfirstlane_b32 s6, v1
    s_mul_i32 {s(S_CP)}, s7, 28
    s_add_u32 {s(S_CP)}, {s(S_CP)}, s8
    s_mul_i32 s9, s8, 37
    s_lshr_b32 s9, s9, 8
    s_mul_i32 s10, s9, 7
    s_sub_u32 {s(S_DT)}, s8, s10
    s_lshl_b32 s10, s7, 2
    s_add_u32 {s(S_LB)}, s9, s10
    s_and_b32 s9, s7, 3
    s_lshl_b32 s9, s9, 2
    s_lshr_b32 s10, s8, 3
    s_add_u32 {s(S_RB)}, s9, s10
    s_lshr_b32 s9, s7, 2
    s_lshl_b32 s9, s9, 3
    s_and_b32 s10, s8, 7
    s_add_u32 {s(S_FS)}, s9, s10
    s_lshl_b32 s9, {s(S_RB)}, 4
    s_add_u32 s9, s9, {s(S_FS)}
    s_lshr_b32 s10, s9, 3
    s_lshl_b32 s10, s10, 7
    s_and_b32 s9, s9, 7
    s_lshl_b32 s9, s9, 2
    s_add_u32 {s(FST)}, s9, s10
    s_and_b32 s9, s2, 31
    s_lshl_b32 {s(FPA)}, s9, 12
    s_lshr_b32 s9, {s(S_LB)}, 1
    s_lshl_b32 s9, s9, 8
    s_add_u32 {s(FPN)}, {s(FPA)}, s9
    s_lshl_b32 {s(S_W1K)}, s6, 10
    s_mul_i32 s9, {s(S_FS)}, {7 * 28672}
    s_add_u32 s9, s9, {W1P}
    s_add_u32 {s(S_WV)}, s9, {s(S_W1K)}
    s_and_b32 s10, s6, 1
    s_mul_i32 s10, s10, 28672
    s_add_u32 s9, s9, s10
    s_lshr_b32 s10, s6, 1
    s_lshl_b32 s10, s10, 10
    s_add_u32 {s(S_WP)}, s9, s10
    ''')
    assert FL == 0
    k.wait_all()
    srd(k, WS, 4, WS_USED)
    k.I(f's_load_dword {s(S_GEN)}, s[4:5], {GEN}')
    k.I(f's_mov_b32 {s(P_OUT)}, {s(P_OUT0)}')
    k.I(f's_mov_b32 {s(P_OUT + 1)}, {s(P_OUT0 + 1)}')
    if STAMP: k.I(f'v_mov_b32 {v(VSTAMP)}, 0')
    if DBGF: k.I('s_mov_b32 s63, 0')


def token(k):
    k.I(f's_mul_i32 {s(TOK)}, {s(S_GEN)}, 0x9E3779B1')
    k.I(f's_add_u32 {s(TOK)}, {s(TOK)}, 0x7F4A7C15')
    k.I(f's_mul_i32 {s(TOKB)}, {s(S_GEN)}, 0x85EBCA6B')
    k.I(f's_add_u32 {s(TOKB)}, {s(TOKB)}, 0xC2B2AE35')


LN_RAW, LN_S = 216, 223


def ln1_issue(k, sr):
    srd(k, sr, P_U, L * D * 2)
    k.M(f'''
    v_lshrrev_b32 v225, 5, v0
    v_mul_u32_u24 v225, 896, v225
    v_and_b32 v224, 31, v0
    v_mul_u32_u24 v224, 28, v224
    v_add_u32 v225, v225, v224
    s_mul_i32 s7, s2, {8 * 896}
    buffer_load_dwordx4 {v(LN_RAW, 4)}, v225, s[{sr}:{sr + 3}], s7 offen
    buffer_load_dwordx3 {v(LN_RAW + 4, 3)}, v225, s[{sr}:{sr + 3}], s7 offen offset:16
    ''')


def ln1_finish(k):
    a_, b_ = LN_S, LN_S + 1
    k.M(f'''
    v_mov_b32 {v(a_)}, 0
    v_mov_b32 {v(b_)}, 0
    v_mov_b32 v225, 0x3f803f80
    ''')
    for j in range(7):
        k.I(f'v_dot2c_f32_bf16 {v(a_)}, {v(LN_RAW + j)}, v225')
        k.I(f'v_dot2c_f32_bf16 {v(b_)}, {v(LN_RAW + j)}, {v(LN_RAW + j)}')
    for pat in ('quad_perm:[1,0,3,2]', 'quad_perm:[2,3,0,1]', 'row_half_mirror', 'row_mirror'):
        for r in (a_, b_):
            k.I(f'v_add_f32_dpp {v(r)}, {v(r)}, {v(r)} {pat} row_mask:0xf bank_mask:0xf')
    for r in (a_, b_):
        k.I(f'v_add_f32_dpp {v(r)}, {v(r)}, {v(r)} row_bcast:15 row_mask:0xa bank_mask:0xf')
    k.M(f'''
    v_lshrrev_b32 v225, 5, v0
    v_lshlrev_b32 v225, 2, v225
    s_lshl_b32 s7, s2, 7
    s_add_u32 s8, s7, {ST1}
    s_mov_b32 exec_lo, 0x80000000
    s_mov_b32 exec_hi, 0x80000000
    buffer_store_dword {v(a_)}, v225, s[{WS}:{WS + 3}], s8 offen sc1
    buffer_store_dword {v(b_)}, v225, s[{WS}:{WS + 3}], s8 offen offset:32 sc1
    s_mov_b64 exec, -1
    ''')
    k.M(f'''
    v_mov_b32 {v(LN_RAW)}, 0
    v_lshlrev_b32 {v(LN_RAW + 1)}, 2, v2
    s_add_u32 s8, s7, {ST3}
    s_cmp_lg_u32 s6, 0
    ''')
    stt = k.skip_begin('s_cbranch_scc1')
    k.I('s_mov_b64 exec, 0xffff')
    k.I(f'buffer_atomic_swap {v(LN_RAW)}, {v(LN_RAW + 1)}, s[{WS}:{WS + 3}], s8 offen sc1')
    k.I('s_mov_b64 exec, -1')
    k.skip_end(stt)


W2_RAW, W2_O = 226, 234


def w2_issue(k, sr):
    srd(k, sr, P_WD, F * D * 2)
    k.M(f'''
    v_lshlrev_b32 v242, 2, v0
    s_lshr_b32 s7, s2, 1
    s_lshl_b32 s7, s7, 4
    s_and_b32 s8, s2, 1
    s_lshl_b32 s8, s8, 2
    s_add_u32 s7, s7, s8
    s_mul_i32 s7, s7, 896
    ''')
    for sl in range(8):
        frow = 8 * (sl >> 2) + (sl & 3)
        k.I(f's_add_u32 s8, s7, {frow * 896}')
        k.I(f'buffer_load_dword {v(W2_RAW + sl)}, v242, s[{sr}:{sr + 3}], s8 offen')


def w2_finish(k):
    k.M(f'''
    v_mov_b32 v243, 0x05040100
    v_mov_b32 v244, 0x07060302
    v_lshrrev_b32 v242, 4, v0
    v_mul_u32_u24 v242, 114688, v242
    v_and_b32 v245, 15, v0
    v_lshl_add_u32 v242, v245, 5, v242
    s_lshl_b32 s7, s2, 9
    s_add_u32 s7, s7, {W2P}
    ''')
    for j in range(4):
        a_, b_ = W2_RAW + 2 * j, W2_RAW + 2 * j + 1
        k.I(f'v_perm_b32 {v(W2_O + j)}, {v(b_)}, {v(a_)}, v243')
        k.I(f'v_perm_b32 {v(W2_O + 4 + j)}, {v(b_)}, {v(a_)}, v244')
    k.I('v_cmp_gt_u32 vcc, 224, v0')
    k.I('s_and_saveexec_b64 s[8:9], vcc')
    k.I(f'buffer_store_dwordx4 {v(W2_O, 4)}, v242, s[{WS}:{WS + 3}], s7 offen sc1')
    k.I(f'buffer_store_dwordx4 {v(W2_O + 4, 4)}, v242, s[{WS}:{WS + 3}], s7 offen offset:16 sc1')
    k.I('s_mov_b64 exec, -1')


KG_ROWS = T0
KG_PART = T0 + 2 * 36864
KG_TAB = T0
X0RAW = 208


def kgen_a(c):
    k = Rec()
    R = 100 * c
    RO = c * 36864
    r = lambda i, n=1: v(i + R, n)
    if c == 0: k.I(f'v_lshlrev_b32 {r(10)}, 16, v206')
    else: k.I(f'v_and_b32 {r(10)}, 0xffff0000, v206')
    k.M(f'''
    v_mul_f32 {r(10)}, {f32hex(LOG2E)}, {r(10)}
    v_exp_f32 {r(10)}, {r(10)}
    v_lshlrev_b32 {r(11)}, 16, {r(11)}
    v_mul_f32 {r(11)}, {f32hex(LOG2E)}, {r(11)}
    v_exp_f32 {r(11)}, {r(11)}
    v_cvt_pk_bf16_f32 {r(8)}, {r(10)}, {r(11)}
    v_lshlrev_b32 {r(10)}, 16, {r(8)}
    v_and_b32 {r(11)}, 0xffff0000, {r(8)}
    v_lshlrev_b32 {r(12)}, 16, {r(12)}
    v_lshlrev_b32 {r(13)}, 16, {r(13)}
    v_lshlrev_b32 {r(14)}, 16, {r(14)}
    v_mul_f32 {r(11)}, {r(11)}, {r(10)}
    v_mul_f32 {r(12)}, {r(12)}, {r(10)}
    v_mul_f32 {r(11)}, {f32hex(-LOG2E)}, {r(11)}
    v_mul_f32 {r(12)}, {f32hex(INV2PI)}, {r(12)}
    v_mul_f32 {r(13)}, {r(13)}, {r(10)}
    v_mul_f32 {r(14)}, {r(14)}, {r(10)}
    ''')
    W = {e: 16 + 2 * e + R for e in range(1, 9)}
    W128 = 36 + R
    C2 = 38 + R
    k.M(f'''
    v_add_f32 v{C2}, {r(13)}, {r(13)}
    v_add_f32 v{C2 + 1}, {r(14)}, {r(14)}
    v_exp_f32 {r(8)}, {r(11)}
    v_fract_f32 {r(9)}, {r(12)}
    v_cos_f32 v{W[1]}, {r(9)}
    v_sin_f32 v{W[1] + 1}, {r(9)}
    v_mul_f32 {r(15)}, 0x43000000, {r(11)}
    v_mul_f32 {r(16)}, 0x43000000, {r(12)}
    v_exp_f32 {r(15)}, {r(15)}
    v_fract_f32 {r(16)}, {r(16)}
    v_mul_f32 v{W[1]}, v{W[1]}, {r(8)}
    v_mul_f32 v{W[1] + 1}, v{W[1] + 1}, {r(8)}
    v_cos_f32 v{W128}, {r(16)}
    v_sin_f32 v{W128 + 1}, {r(16)}
    v_mul_f32 v{W128}, v{W128}, {r(15)}
    v_mul_f32 v{W128 + 1}, v{W128 + 1}, {r(15)}
    ''')
    cmul(k, W[2], W[1], W[1])
    cmul(k, W[4], W[2], W[2])
    cmul(k, W[3], W[2], W[1])
    cmul(k, W[8], W[4], W[4])
    cmul(k, W[5], W[4], W[1])
    cmul(k, W[6], W[3], W[3])
    cmul(k, W[7], W[4], W[3])
    tmpi = [0]

    def put_row(row, pair, neg):
        t = 8 + R + (tmpi[0] & 1)
        tmpi[0] += 1
        k.I(f'v_cvt_pk_bf16_f32 {v(t)}, {v(pair)}, {"-" if neg else ""}{v(pair + 1)}')
        k.I(f'ds_write_b32 v5, {v(t)} offset:{RO + row * 288}')

    LO = {1: W[8]}
    for b in range(2, 9): LO[b] = 40 + R + 2 * (b - 2)
    T = [54 + R, 56 + R]
    k.I(f'v_mov_b32 {r(8)}, 0x3f80')
    k.I(f'ds_write_b32 v5, {r(8)} offset:{RO}')
    tmpi[0] = 1
    put_row(1, LO[1], True)
    for b in range(2, 9):
        if b % 2 == 0: cmul(k, LO[b], LO[b // 2], LO[b // 2])
        else:
            hb = 1 << (b.bit_length() - 1)
            cmul(k, LO[b], LO[hb], LO[b - hb])
        put_row(b, LO[b], True)
    for b in range(9, 16):
        t = T[b & 1]
        if b % 2 == 0: cmul(k, t, LO[b // 2], LO[b // 2])
        else: cmul(k, t, LO[8], LO[b - 8])
        put_row(b, t, True)
    BF = 60 + R
    for ks in range(4):
        k.I(f'ds_read_b128 {v(BF + 4 * ks, 4)}, v6 offset:{RO + ks * 64}')
    AF = 76 + R
    DT = 92 + R
    H = [40 + R, 42 + R]

    def tile_mfma(t):
        for ks in range(4):
            k.I(f'ds_read_b128 {v(AF + 4 * ks, 4)}, v6 offset:{RO + 16 * 288 + ks * 64}')
        for ks in range(4):
            c_ = '0' if ks == 0 else v(DT + 4 * t, 4)
            k.I(f'v_mfma_f32_16x16x32_bf16 {v(DT + 4 * t, 4)}, {v(AF + 4 * ks, 4)}, {v(BF + 4 * ks, 4)}, {c_}')

    def row_mul(row, h, e):
        if e == 0:
            put_row(16 + row, h, False)
        else:
            t = T[row & 1]
            cmul(k, t, h, W[e])
            put_row(16 + row, t, False)

    for e in range(8): row_mul(e, C2, e)
    cur = [H[0]]
    cmul(k, cur[0], C2, W128)
    for e in range(8): row_mul(8 + e, cur[0], e)
    tile_mfma(0)
    hi = [0]

    def step():
        hi[0] ^= 1
        cmul(k, H[hi[0]], cur[0], W128)
        cur[0] = H[hi[0]]

    step()
    for e in range(4): row_mul(e, cur[0], 2 * e)
    step()
    for e in range(4): row_mul(4 + e, cur[0], 2 * e)
    for a_ in range(4):
        step()
        for e in range(2): row_mul(8 + 2 * a_ + e, cur[0], 4 * e)
    tile_mfma(1)
    for a_ in range(9):
        step()
        row_mul(a_, cur[0], 0)
    tile_mfma(2)
    for t in range(3):
        k.I(f'ds_write_b128 v7, {v(DT + 4 * t, 4)} offset:{c * 12288 + t * 1024}')
    return k.l


def phase0_conv(k, st):
    PB = D * NM * 2
    k.M(f'''
    v_lshlrev_b32 v3, 1, v0
    v_mov_b32 v4, 0
    s_lshl_b32 s7, {s(S_CP)}, 10
    s_add_u32 s8, s7, 512
    s_lshl_b32 s9, {s(S_CP)}, 2
    ''')
    srd(k, 24, P_LDT, D * 2)
    k.I('buffer_load_dword v206, v4, s[24:27], s9 offen')
    for i, (ptr, reg) in enumerate(((P_LAR, 11), (P_AIM, 12), (P_CR, 13), (P_CI, 14))):
        sr = 28 if i & 1 == 0 else 32
        srd(k, sr, ptr, PB)
        k.I(f'buffer_load_ushort {v(reg)}, v3, s[{sr}:{sr + 3}], s7 offen')
        k.I(f'buffer_load_ushort {v(reg + 100)}, v3, s[{sr}:{sr + 3}], s8 offen')
    k.I(f's_load_dword {s(S_DSK)}, s[{P_DSK}:{P_DSK + 1}], s9')
    ln1_issue(k, 24)
    w2_issue(k, 28)
    srd(k, 32, P_U, L * D * 2)
    k.I(f'v_mul_u32_u24 v207, {8 * 896}, v0')
    for j in range(8):
        if j < 4:
            k.I(f'buffer_load_dword {v(X0RAW + j)}, v207, s[32:35], s9 offen offset:{j * 896}')
        else:
            if j == 4: k.I(f's_add_u32 s10, s9, {4 * 896}')
            k.I(f'buffer_load_dword {v(X0RAW + j)}, v207, s[32:35], s10 offen offset:{(j - 4) * 896}')
    k.M(f'''
    s_mul_i32 s19, s6, 9216
    s_add_u32 s19, s19, {KG_ROWS}
    v_lshlrev_b32 v5, 2, v2
    v_add_u32 v5, s19, v5
    v_and_b32 v6, 15, v2
    v_mul_u32_u24 v6, 288, v6
    v_lshrrev_b32 v7, 4, v2
    v_lshl_add_u32 v6, v7, 4, v6
    v_add_u32 v6, s19, v6
    s_mul_i32 s19, s6, 3072
    s_add_u32 s19, s19, {KG_PART}
    v_lshlrev_b32 v7, 4, v2
    v_add_u32 v7, s19, v7
    ''')
    token(k)
    st('p0:issued')
    ln1_finish(k)
    st('p0:ln1')
    w2_finish(k)
    st('p0:w2')
    interleave(k, kgen_a(0), kgen_a(1))
    st('p0:tiles')
    k.wait_all()
    k.I('s_barrier')
    wave0(k, lambda: emit_signal(k, 1, True))
    st('p0:sig1')
    k.I('v_lshlrev_b32 v7, 2, v0')
    k.I(f'v_add_u32 v7, {KG_PART}, v7')
    for c in range(2):
        for t in range(3):
            for w in range(4):
                k.I(f'ds_read_b32 {v(40 + 100 * c + 4 * t + w)}, v7 offset:{c * 12288 + w * 3072 + t * 1024}')
    k.M('''
    v_and_b32 v8, 3, v0
    v_bfe_u32 v9, v0, 2, 4
    s_lshr_b32 s19, s6, 1
    s_lshl_b32 s19, s19, 7
    s_and_b32 s18, s6, 1
    s_lshl_b32 s18, s18, 2
    s_add_u32 s19, s19, s18
    v_lshl_add_u32 v10, v9, 3, v8
    v_add_u32 v10, s19, v10
    v_lshl_add_u32 v11, v9, 2, v8
    s_lshl_b32 s19, s6, 6
    s_add_u32 s19, s19, 256
    v_add_u32 v11, s19, v11
    v_and_b32 v12, 1, v8
    v_lshrrev_b32 v13, 1, v8
    v_lshl_add_u32 v12, v13, 5, v12
    v_lshl_add_u32 v12, v9, 1, v12
    v_add_u32 v12, s19, v12
    s_cmp_lt_u32 s6, 2
    s_cselect_b64 vcc, -1, 0
    v_cndmask_b32 v11, v12, v11, vcc
    v_lshl_add_u32 v12, v8, 4, v9
    s_lshl_b32 s19, s6, 6
    s_add_u32 s19, s19, 512
    v_add_u32 v12, s19, v12
    v_lshlrev_b32 v10, 2, v10
    v_lshlrev_b32 v11, 2, v11
    v_lshlrev_b32 v12, 2, v12
    ''')
    for c in range(2):
        for t in range(3):
            b = 40 + 100 * c + 4 * t
            k.I(f'v_add_f32 {v(b)}, {v(b)}, {v(b + 1)}')
            k.I(f'v_add_f32 {v(b + 2)}, {v(b + 2)}, {v(b + 3)}')
            k.I(f'v_add_f32 {v(b)}, {v(b)}, {v(b + 2)}')
    for c in range(2):
        for t in range(3):
            k.I(f'ds_write_b32 {v(10 + t)}, {v(40 + 100 * c + 4 * t)} offset:{KG_TAB + c * 4096}')
    k.M(f'''
    v_mov_b32 v13, 0
    v_mov_b32 v14, 3072
    ds_write_b32 v14, v13 offset:{KG_TAB}
    ds_write_b32 v14, v13 offset:{KG_TAB + 4096}
    v_lshlrev_b32 v15, 3, v0
    v_sub_u32 v15, 2047, v15
    v_cvt_f32_u32 v16, v15
    v_mov_b32 v17, 0x43000000
    v_cmp_le_u32 vcc, 240, v0
    v_cndmask_b32 v18, 0, v17, vcc
    v_add_f32 v16, v16, v18
    v_mov_b32 v19, 0xfffef600
    v_mov_b32 v20, 0xfffef400
    v_cndmask_b32 v19, v19, v20, vcc
    ''')
    for e in range(8):
        if e == 0: k.I('v_mov_b32 v22, v16')
        else: k.I(f'v_add_f32 {v(22 + e)}, {f32hex(-float(e))}, v16')
    k.M('''
    v_cvt_f32_u32 v30, v15
    v_add_f32 v30, 0xc1000000, v30
    v_cmp_le_u32 vcc, 239, v0
    v_cndmask_b32 v18, 0, v17, vcc
    v_add_f32 v30, v30, v18
    v_mov_b32 v21, 0xfffef600
    v_cndmask_b32 v21, v21, v20, vcc
    ''')
    for j in range(4):
        k.I(f'v_cvt_pk_bf16_f32 {v(32 + j)}, {v(22 + 2 * j)}, {v(23 + 2 * j)}')
    k.I('v_cvt_pk_bf16_f32 v36, v30, v30')
    for e in range(8):
        sel = '[1,0,0,0]' if e & 1 else '[0,0,0,0]'
        k.I(f'v_mad_u32_u16 {v(22 + e)}, {v(32 + e // 2)}, 4, v19 op_sel:{sel}')
    k.I('v_mad_u32_u16 v30, v36, 4, v21 op_sel:[0,0,0,0]')
    k.M('''
    v_cmp_eq_u32 vcc, 255, v0
    v_cndmask_b32 v30, v30, v14, vcc
    ''')
    k.barrier()
    st('p0:table')
    for c in range(2):
        for e in range(9):
            k.I(f'ds_read_b32 {v(40 + 100 * c + e)}, {v(22 + e)} offset:{KG_TAB + c * 4096}')
    k.I('v_lshlrev_b32 v7, 4, v0')
    for c in range(2):
        R = 100 * c
        for j in range(4):
            k.I(f'v_cvt_pk_bf16_f32 {v(52 + R + j)}, {v(40 + R + 2 * j)}, {v(41 + R + 2 * j)}')
        for j in range(4):
            k.I(f'v_cvt_pk_bf16_f32 {v(56 + R + j)}, {v(41 + R + 2 * j)}, {v(42 + R + 2 * j)}')
        k.I(f'ds_write_b128 v7, {v(52 + R, 4)} offset:{KSL + c * KS_STRIDE}')
        k.I(f'ds_write_b128 v7, {v(56 + R, 4)} offset:{KSL + c * KS_STRIDE + KS_O}')
    k.M('''
    v_mov_b32 v60, 0
    v_mov_b32 v61, 0
    v_mov_b32 v62, 0
    v_mov_b32 v63, 0
    v_add_u32 v8, 4096, v7
    v_add_u32 v9, 8192, v7
    v_cmp_le_u32 vcc, 4, v0
    v_cndmask_b32 v8, v8, v9, vcc
    s_cmp_lg_u32 s6, 0
    ''')
    stt = k.skip_begin('s_cbranch_scc1')
    k.I('s_mov_b64 exec, 0xff')
    k.I(f'ds_write_b128 v8, v[60:63] offset:{KSL}')
    k.I(f'ds_write_b128 v8, v[60:63] offset:{KSL + KS_STRIDE}')
    k.I('s_mov_b64 exec, -1')
    k.skip_end(stt)
    st('p0:kdone')


def wblocks():
    bl = [('P', i) for i in range(14)]
    for t in range(2, 7):
        for q in range(7): bl.append(('V', t, q))
    return bl


def w_dma(b, tmp='s18'):
    blk = wblocks()[b]
    slot = b % NWR_
    out = [f's_add_u32 m0, {s(S_W1K)}, {WRING + slot * 4096}']
    if blk[0] == 'P':
        out.append(f's_add_u32 {tmp}, {s(S_WP)}, {blk[1] * 2048}')
    else:
        out.append(f's_add_u32 {tmp}, {s(S_WV)}, {blk[1] * 28672 + blk[2] * 4096}')
    out.append(f'buffer_load_dwordx4 v4, s[{WS}:{WS + 3}], {tmp} offen lds')
    return out


UL = T0
UST = 4608
PL = UL + 2 * UST
PW, PT = 9216, 1152
CX, CS1, CS2 = 8, 16, 24
CAB, CBB = 36, 40


def round_pair(k, d0, d1, s0, s1, tmp):
    k.I(f'v_cvt_pk_bf16_f32 {v(tmp)}, {v(s0)}, {v(s1)}')
    k.I(f'v_lshlrev_b32 {v(d0)}, 16, {v(tmp)}')
    k.I(f'v_and_b32 {v(d1)}, 0xffff0000, {v(tmp)}')


def ln_stats(k, S1, S2, n, tmp):
    c = f32hex(1.0 / D)
    for i in range(n):
        k.I(f'v_mul_f32 {v(S1 + i)}, {c}, {v(S1 + i)}')
        k.I(f'v_mul_f32 {v(S2 + i)}, {c}, {v(S2 + i)}')
    for i in range(n):
        k.I(f'v_fma_f32 {v(S2 + i)}, -{v(S1 + i)}, {v(S1 + i)}, {v(S2 + i)}')
        k.I(f'v_max_f32 {v(S2 + i)}, 0, {v(S2 + i)}')
    for i in range(0, n, 2):
        round_pair(k, S1 + i, S1 + i + 1, S1 + i, S1 + i + 1, tmp)
        round_pair(k, S2 + i, S2 + i + 1, S2 + i, S2 + i + 1, tmp + 1)
    for i in range(n):
        k.I(f'v_add_f32 {v(S2 + i)}, {f32hex(1e-5)}, {v(S2 + i)}')
    for i in range(0, n, 2):
        round_pair(k, S2 + i, S2 + i + 1, S2 + i, S2 + i + 1, tmp + ((i >> 1) & 1))
    for i in range(n):
        k.I(f'v_sqrt_f32 {v(S2 + i)}, {v(S2 + i)}')
    for i in range(0, n, 2):
        round_pair(k, S2 + i, S2 + i + 1, S2 + i, S2 + i + 1, tmp + ((i >> 1) & 1))
    for i in range(n):
        k.I(f'v_rcp_f32 {v(S2 + i)}, {v(S2 + i)}')
    for i in range(n):
        k.I(f'v_mul_f32 {v(S1 + i)}, -{v(S1 + i)}, {v(S2 + i)}')


def conv_prep(k, stage):
    if stage == 0:
        k.I('v_mov_b32 v32, 0x05040100')
        k.I('v_mov_b32 v33, 0x07060302')
        for j in range(4):
            k.I(f'v_perm_b32 {v(CX + j)}, {v(X0RAW + 2 * j + 1)}, {v(X0RAW + 2 * j)}, v32')
            k.I(f'v_perm_b32 {v(CX + 4 + j)}, {v(X0RAW + 2 * j + 1)}, {v(X0RAW + 2 * j)}, v33')
    k.M(f'''
    v_lshlrev_b32 v3, 4, v0
    v_lshlrev_b32 v4, 4, v2
    v_lshlrev_b32 v5, 7, v0
    v_and_b32 v6, 15, v2
    v_lshrrev_b32 v7, 4, v2
    s_and_b32 s17, s6, 1
    s_lshr_b32 s18, s6, 1
    v_lshlrev_b32 v32, 1, v6
    v_sub_u32 v33, {2 * 2031 - 4032}, v32
    v_sub_u32 v34, {KS_O + 2 * 2030 - 4032}, v32
    v_and_b32 v35, 1, v6
    v_cmp_eq_u32 vcc, 1, v35
    v_cndmask_b32 v33, v34, v33, vcc
    v_lshl_add_u32 v33, v7, 4, v33
    s_mul_i32 s19, s17, {KS_STRIDE}
    s_lshl_b32 s24, s18, 8
    s_sub_u32 s19, s19, s24
    s_add_u32 s19, s19, {KSL + 256}
    v_add_u32 {v(CAB)}, s19, v33
    v_add_u32 {v(CAB + 1)}, 1024, {v(CAB)}
    v_add_u32 {v(CAB + 2)}, 2048, {v(CAB)}
    v_add_u32 {v(CAB + 3)}, 3072, {v(CAB)}
    v_lshlrev_b32 v32, 5, v6
    v_lshl_add_u32 v32, v7, 4, v32
    s_mul_i32 s19, s17, {UST}
    s_sub_u32 s19, s19, s24
    s_add_u32 s19, s19, {UL + 288}
    v_add_u32 {v(CBB)}, s19, v32
    ''')


def conv_phase(k, st, stage):
    xin = None if stage == 0 else XT2
    xout = XT1 if stage == 0 else XT3
    sto = ST1 if stage == 0 else ST3
    W_ = f's[{WS}:{WS + 3}]'
    k.M(f'''
    s_lshl_b32 s11, {s(S_CP)}, 13
    s_mov_b32 s13, {sto}
    buffer_load_dwordx4 {v(CS1, 4)}, v5, {W_}, s13 offen
    buffer_load_dwordx4 {v(CS2, 4)}, v5, {W_}, s13 offen offset:32
    buffer_load_dwordx4 {v(CS1 + 4, 4)}, v5, {W_}, s13 offen offset:16
    buffer_load_dwordx4 {v(CS2 + 4, 4)}, v5, {W_}, s13 offen offset:48
    ''')
    if stage == 1:
        k.M(f'''
        s_add_u32 s14, s11, {xin}
        s_add_u32 s15, s11, {xin + 4096}
        buffer_load_dwordx4 {v(CX, 4)}, v3, {W_}, s14 offen
        buffer_load_dwordx4 {v(CX + 4, 4)}, v3, {W_}, s15 offen
        ''')
    k.M(f'''
    v_mov_b32 v32, 0
    v_mov_b32 v33, 0
    v_mov_b32 v34, 0
    v_mov_b32 v35, 0
    v_and_b32 v6, 31, v0
    v_lshlrev_b32 v6, 4, v6
    ds_write_b128 v6, v[32:35] offset:{UL}
    ds_write_b128 v6, v[32:35] offset:{UL + UST}
    s_add_u32 s11, s11, {xout}
    s_add_u32 s12, s11, 4096
    s_lshl_b32 s37, {s(S_DSK)}, 16
    s_and_b32 s38, {s(S_DSK)}, 0xffff0000
    ''')
    st('cv:issued')
    ln_stats(k, CS1, CS2, 8, 32)
    st('cv:stats')
    U = 44
    T = 52
    S1, S2, X = CS1, CS2, CX
    for ch in range(2):
        for j in range(4):
            x = X + 4 * ch + j
            t0, t1 = T + 2 * (j & 1) + 4 * (ch & 1), T + 2 * (j & 1) + 1 + 4 * (ch & 1)
            k.I(f'v_lshlrev_b32 {v(t0)}, 16, {v(x)}')
            k.I(f'v_and_b32 {v(t1)}, 0xffff0000, {v(x)}')
            k.I(f'v_fma_f32 {v(t0)}, {v(t0)}, {v(S2 + 2 * j)}, {v(S1 + 2 * j)}')
            k.I(f'v_fma_f32 {v(t1)}, {v(t1)}, {v(S2 + 2 * j + 1)}, {v(S1 + 2 * j + 1)}')
            k.I(f'v_cvt_pk_bf16_f32 {v(U + 4 * ch + j)}, {v(t0)}, {v(t1)}')
        k.I(f'ds_write_b128 v3, {v(U + 4 * ch, 4)} offset:{UL + ch * UST + 512}')
    k.barrier()
    st('cv:u')
    ACC = 64
    AF = [96, 128]
    BF = [160, 192]

    def frag_loads(rr, buf):
        out = []
        def aload(c):
            j = (7 - c) >> 1
            o = 128 * ((7 - c) & 1) + 16 * (3 - rr)
            out.append(f'ds_read2_b32 {v(AF[buf] + 4 * c, 2)}, {v(CAB + j)} offset0:{o} offset1:{o + 1}')
            out.append(f'ds_read2_b32 {v(AF[buf] + 4 * c + 2, 2)}, {v(CAB + j)} offset0:{o + 2} offset1:{o + 3}')
        def bload(tau):
            out.append(f'ds_read_b128 {v(BF[buf] + 4 * tau, 4)}, {v(CBB)} offset:{512 * tau + 64 * (3 - rr)}')
        aload(0)
        for tau in range(8): bload(tau)
        for c in range(1, 8): aload(c)
        return out

    for t in frag_loads(0, 0): k.I(t)
    wq = list(range(NWR_))
    for rr in range(4):
        buf = rr & 1
        nxt = frag_loads(rr + 1, buf ^ 1) if rr < 3 else []
        cnt = 0
        for c in range(8):
            for tau in range(8 - c):
                t = tau + c
                src = '0' if (rr == 0 and c == 0) else v(ACC + 4 * t, 4)
                k.I(f'v_mfma_f32_16x16x32_bf16 {v(ACC + 4 * t, 4)}, {v(AF[buf] + 4 * c, 4)}, {v(BF[buf] + 4 * tau, 4)}, {src}')
                if nxt and cnt < 24:
                    k.I(nxt.pop(0))
                elif wq and (cnt & 1) == 0 and (rr < 3 or cnt < 24):
                    for x_ in w_dma(wq.pop(0)): k.I(x_)
                cnt += 1
        assert not nxt
    assert not wq
    st('cv:mfma')
    k.M(f'''
    v_lshrrev_b32 v6, 5, v2
    v_lshlrev_b32 v6, 7, v6
    v_add_u32 v6, v6, v4
    s_mul_i32 s19, s6, {PW}
    v_add_u32 v6, s19, v6
    ''')
    for t in range(8):
        k.I(f'ds_write_b128 v6, {v(ACC + 4 * t, 4)} offset:{PL + t * PT}')
    k.M(f'''
    v_lshrrev_b32 v7, 5, v0
    v_mul_u32_u24 v7, {PT}, v7
    v_bfe_u32 v32, v0, 1, 4
    v_lshl_add_u32 v7, v32, 4, v7
    v_and_b32 v32, 1, v0
    v_mul_u32_u24 v32, 640, v32
    v_add_u32 v7, v7, v32
    ''')
    k.barrier()
    Y = 96
    for ch in range(2):
        for hf in range(2):
            for e in range(2):
                k.I(f'ds_read_b128 {v(Y + 16 * ch + 8 * hf + 4 * e, 4)}, v7 offset:{PL + (ch + 2 * hf) * PW + 256 * e}')
    O = 128
    for ch in range(2):
        dsk = s(37 + ch)
        for j in range(4):
            y0, y1 = Y + 16 * ch + 2 * j, Y + 16 * ch + 2 * j + 1
            t0, t1, t2, t3 = T, T + 1, T + 2, T + 3
            if j & 1: t0, t1, t2, t3 = T + 4, T + 5, T + 6, T + 7
            k.I(f'v_add_f32 {v(y0)}, {v(y0)}, {v(y0 + 8)}')
            k.I(f'v_add_f32 {v(y1)}, {v(y1)}, {v(y1 + 8)}')
            k.I(f'v_lshlrev_b32 {v(t0)}, 16, {v(U + 4 * ch + j)}')
            k.I(f'v_and_b32 {v(t1)}, 0xffff0000, {v(U + 4 * ch + j)}')
            k.I(f'v_lshlrev_b32 {v(t2)}, 16, {v(X + 4 * ch + j)}')
            k.I(f'v_and_b32 {v(t3)}, 0xffff0000, {v(X + 4 * ch + j)}')
            k.I(f'v_fma_f32 {v(y0)}, {v(t0)}, {dsk}, {v(y0)}')
            k.I(f'v_fma_f32 {v(y1)}, {v(t1)}, {dsk}, {v(y1)}')
            k.I(f'v_add_f32 {v(y0)}, {v(y0)}, {v(t2)}')
            k.I(f'v_add_f32 {v(y1)}, {v(y1)}, {v(t3)}')
            k.I(f'v_cvt_pk_bf16_f32 {v(O + 4 * ch + j)}, {v(y0)}, {v(y1)}')
        k.I(f'buffer_store_dwordx4 {v(O + 4 * ch, 4)}, v3, {W_}, {s(11 + ch)} offen sc1')
    st('cv:stored')


G_VX, G_VL = 3, 4
G_VT, G_VW = 12, (8, 9)


def glu_prep(k):
    k.M(f'''
    v_lshrrev_b32 v5, 4, v2
    v_and_b32 v6, 15, v2
    v_lshlrev_b32 v7, 2, v5
    v_xor_b32 v6, v6, v7
    v_lshlrev_b32 v6, 4, v6
    s_lshl_b32 s12, s6, 2
    v_add_u32 v7, s12, v5
    v_lshlrev_b32 v7, 12, v7
    v_add_u32 {v(G_VX)}, v6, v7
    v_lshlrev_b32 {v(G_VL)}, 4, v2
    v_lshrrev_b32 v16, 5, v2
    v_lshlrev_b32 v16, 3, v16
    v_bfe_u32 v17, v2, 2, 2
    v_add_u32 v16, v16, v17
    v_lshlrev_b32 v16, 8, v16
    v_bfe_u32 v18, v2, 4, 1
    v_lshlrev_b32 v18, 1, v18
    v_bfe_u32 v19, v2, 1, 1
    v_add_u32 v18, v18, v19
    v_add_u32 v18, s12, v18
    v_lshlrev_b32 v17, 2, v17
    v_xor_b32 v18, v18, v17
    v_lshl_add_u32 v16, v18, 4, v16
    v_and_b32 v19, 1, v2
    v_lshl_add_u32 {v(G_VT)}, v19, 3, v16
    v_add_u32 {v(G_VT)}, {XRING}, {v(G_VT)}
    v_add_u32 {v(G_VW[0])}, {WRING}, {v(G_VL)}
    v_add_u32 {v(G_VW[1])}, {WRING + 65536}, {v(G_VL)}
    ''')


def glu_phase(k, st, stage):
    xin = XT1 if stage == 0 else XT3
    hp = HP[stage]
    W_ = f's[{WS}:{WS + 3}]'
    NFT, P1T = 7, 2
    WB = wblocks()
    blocks = [('X', j) for j in range(28)] + WB
    NB = len(blocks)
    bidx = {b: i for i, b in enumerate(blocks)}
    XN = 28
    epoch = {}
    for j in range(28): epoch[j] = j // 4
    for i in range(len(WB)):
        epoch[XN + i] = -1 if i < NWR_ else 7 + (i - NWR_) // 4
    k.M(f'''
    s_lshl_b32 s13, {s(S_RB)}, 8
    s_add_u32 s13, s13, {xin}
    v_mov_b32 v16, 0x3f803f80
    v_mov_b32 v17, 0
    v_mov_b32 v18, 0
    s_lshl_b32 s19, {s(S_RB)}, 2
    s_add_u32 s19, s19, s6
    s_mul_i32 s19, s19, {112 * 1024}
    s_mul_i32 s24, {s(S_FS)}, {NFT * 1024}
    s_add_u32 s19, s19, s24
    s_add_u32 s19, s19, {hp}
    ''')
    dma = {}
    nreads = {i: (2 if blocks[i][0] == 'X' else 4) for i in range(NB)}
    reads = {i: [] for i in range(NB)}
    stt = dict(nx=0, nw=NWR_, synced=-1, free=set())

    def dma_instrs(b):
        if b < XN:
            slot = b % NXR
            return [f's_add_u32 m0, {s(S_W1K)}, {XRING + slot * 4096}',
                    f's_add_u32 s18, s13, {b * 65536}',
                    f'buffer_load_dwordx4 {v(G_VX)}, {W_}, s18 offen lds']
        return w_dma(b - XN)

    def issue(b):
        for t in dma_instrs(b): h = k.I(t)
        dma[b] = h

    for b in range(NXR): issue(b)
    stt['nx'] = NXR

    ONES, S1, S2, C1, SD, TMP = 16, 17, 18, 19, 20, 21
    HO = [24, 28]
    XF = 32
    WR = 144
    NWR = 8
    ACC = [176, 192, 208, 224]

    fill = []
    isdma = lambda x: isinstance(x[1], tuple) and x[1][0] == 'dma'

    def try_queue_dma():
        new = []
        while stt['nx'] < XN and (stt['nx'] - NXR) in stt['free']:
            new.append((12, ('dma', stt['nx']))); stt['nx'] += 1
        while stt['nw'] < len(WB) and (XN + stt['nw'] - NWR_) in stt['free']:
            new.append((12, ('dma', XN + stt['nw']))); stt['nw'] += 1
        pos = sum(1 for x in fill if isdma(x))
        fill.sort(key=lambda x: 0 if isdma(x) else 1)
        fill[pos:pos] = new

    def flush_dma_for(e):
        i = 0
        while i < len(fill):
            it = fill[i][1]
            if isdma(fill[i]) and epoch[it[1]] <= e:
                issue(it[1]); fill.pop(i)
                print('   warning: late DMA', it[1])
            else:
                i += 1

    def sync(e):
        flush_dma_for(e)
        ops = [dma[b] for b in range(NB) if epoch[b] == e]
        k.barrier(vm_ops=ops, lg=False)
        stt['synced'] = e
        for b in range(NB):
            if len(reads[b]) == nreads[b] and not any(r in k.lgq for r in reads[b]):
                stt['free'].add(b)
        try_queue_dma()

    def rd(b, text):
        while epoch[b] > stt['synced']:
            sync(stt['synced'] + 1)
        reads[b].append(k.I(text))

    def rd_x(j):
        b = j
        for half in range(2):
            off = (b % NXR) * 4096 + half * 1024
            yield lambda b=b, off=off, half=half: rd(b, f'ds_read_b64_tr_b16 {v(XF + 4 * j + 2 * half, 2)}, {v(G_VT)} offset:{off}')

    wcount = [0]

    def rd_w(b, frag):
        r = WR + 4 * (wcount[0] % NWR)
        wcount[0] += 1
        a_ = ((b - XN) % NWR_) * 4096 + frag * 1024
        hi, off = a_ >> 16, a_ & 0xffff
        return r, (lambda: rd(b, f'ds_read_b128 {v(r, 4)}, {v(G_VW[hi])} offset:{off}'))

    def run_fill(budget):
        while fill and budget > 0:
            c, it = fill[0][:2]
            if c > budget + 4: break
            fill.pop(0)
            if isinstance(it, tuple):
                if it[0] == 'dma': issue(it[1])
                else:
                    for t in it[1]: k.I(t)
            else:
                k.I(it)
            budget -= c

    def mfma(acc, wr, xf, first):
        c = '0' if first else v(acc, 16)
        k.I(f'v_mfma_f32_32x32x16_bf16 {v(acc, 16)}, {v(wr, 4)}, {v(xf, 4)}, {c}')

    w2q = []
    if stage == 0:
        k.M(f'''
        s_lshl_b32 s26, {s(S_DT)}, 1
        s_lshr_b32 s27, s6, 1
        s_add_u32 s26, s26, s27
        s_xor_b32 s27, s26, 1
        s_mul_i32 s26, s26, {112 * 1024}
        s_mul_i32 s27, s27, {112 * 1024}
        s_mul_i32 s28, s6, {28 * 1024}
        s_add_u32 s28, s28, {W2P}
        s_add_u32 s26, s26, s28
        s_add_u32 s27, s27, s28
        ''')
        for s_ in range(28):
            for half in range(2):
                it = []
                if s_ % 4 == 0 and s_ > 0: it.append(f's_add_u32 s{26 + half}, s{26 + half}, 4096')
                off = (s_ % 4) * 1024
                it.append(f'buffer_load_dwordx4 {a(8 * s_ + 4 * half, 4)}, {v(G_VL)}, {W_}, s{26 + half} offen' + (f' offset:{off}' if off else ''))
                w2q.append((12, ('grp', it)))

    def w2_feed(n):
        for _ in range(n):
            if w2q: fill.append(w2q.pop(0))

    def group_reads(i):
        bP = bidx[('P', i)]
        th, wr = [], []
        xs = list(rd_x(2 * i)) + list(rd_x(2 * i + 1))
        for f in range(4):
            r, t = rd_w(bP, f)
            wr.append(r); th.append(t)
        order = [th[0], xs[0], xs[1], th[1], th[2], xs[2], xs[3], th[3]]
        return wr, order

    st('g:issued')
    wr_cur, th = group_reads(0)
    for t in th: t()
    st('g:first')
    p2 = []
    for t in range(P1T, NFT):
        for ks in range(28): p2.append((t, ks))
    p2regs = {}
    p2ptr = [0]

    def p2_read():
        if p2ptr[0] >= len(p2): return
        t, ks = p2[p2ptr[0]]
        p2ptr[0] += 1
        r, th_ = rd_w(bidx[('V', t, ks >> 2)], ks & 3)
        p2regs[(t, ks)] = r
        th_()

    W2_P1, W2_P2 = int(os.environ.get('W2_P1', 1)), int(os.environ.get('W2_P2', 9))
    for i in range(14):
        if i < 13:
            wr_nxt, th = group_reads(i + 1)
        else:
            wr_nxt, th = None, [p2_read] * 4
        if i >= 3: w2_feed(W2_P1)
        for m in range(4):
            ks = 2 * i + (m >> 1)
            mfma(ACC[m & 1], wr_cur[m], XF + 4 * ks, ks == 0)
            n = 2 if i < 13 else 1
            for _ in range(n): th.pop(0)()
            run_fill(24 - 8 * n)
        for ks in (2 * i, 2 * i + 1):
            for r in range(4):
                k.I(f'v_dot2c_f32_bf16 {v(S1)}, {v(XF + 4 * ks + r)}, {v(ONES)}')
                k.I(f'v_dot2c_f32_bf16 {v(S2)}, {v(XF + 4 * ks + r)}, {v(XF + 4 * ks + r)}')
        wr_cur = wr_nxt
    st('g:p1')
    c = f32hex(1.0 / D)
    fin = [f'v_mov_b32 {v(TMP)}, {v(S1)}', f'v_mov_b32 {v(TMP + 1)}, {v(S2)}',
           f'v_permlane32_swap_b32 {v(S1)}, {v(TMP)}', f'v_permlane32_swap_b32 {v(S2)}, {v(TMP + 1)}',
           f'v_add_f32 {v(S1)}, {v(S1)}, {v(TMP)}', f'v_add_f32 {v(S2)}, {v(S2)}, {v(TMP + 1)}',
           f'v_mul_f32 {v(S1)}, {c}, {v(S1)}', f'v_mul_f32 {v(S2)}, {c}, {v(S2)}',
           f'v_fma_f32 {v(S2)}, -{v(S1)}, {v(S1)}, {v(S2)}',
           f'v_max_f32 {v(S2)}, 0, {v(S2)}',
           f'v_cvt_pk_bf16_f32 {v(TMP)}, {v(S2)}, {v(S2)}',
           f'v_lshlrev_b32 {v(S2)}, 16, {v(TMP)}',
           f'v_add_f32 {v(S2)}, {f32hex(1e-5)}, {v(S2)}',
           f'v_cvt_pk_bf16_f32 {v(TMP)}, {v(S2)}, {v(S2)}',
           f'v_lshlrev_b32 {v(S2)}, 16, {v(TMP)}',
           f'v_sqrt_f32 {v(S2)}, {v(S2)}',
           f'v_cvt_pk_bf16_f32 {v(TMP)}, {v(S2)}, {v(S2)}',
           f'v_lshlrev_b32 {v(SD)}, 16, {v(TMP)}',
           f'v_rcp_f32 {v(C1)}, {v(SD)}',
           f'v_mul_f32 {v(C1)}, {f32hex(-LOG2E)}, {v(C1)}']
    for t in fin: fill.append((8 if ('sqrt' in t or 'rcp' in t) else 4, t))

    def epilogue(t):
        A = ACC[t % 4]
        ho = HO[t & 1]
        items = []
        for i in range(8): items.append((4, f'v_mul_f32 {v(A + i)}, {v(A + i)}, {v(C1)}'))
        for i in range(8): items.append((8, f'v_exp_f32 {v(A + i)}, {v(A + i)}'))
        for i in range(8): items.append((4, f'v_fma_f32 {v(A + i)}, {v(A + i)}, {v(SD)}, {v(SD)}'))
        for i in range(8): items.append((8, f'v_rcp_f32 {v(A + i)}, {v(A + i)}'))
        for i in range(8): items.append((4, f'v_mul_f32 {v(A + 8 + i)}, {v(A + 8 + i)}, {v(A + i)}'))
        for i in range(4): items.append((4, f'v_cvt_pk_bf16_f32 {v(ho + i)}, {v(A + 8 + 2 * i)}, {v(A + 9 + 2 * i)}'))
        items.append((4, f's_add_u32 s25, s19, {t * 1024}'))
        items.append((8, f'buffer_store_dwordx4 {v(ho, 4)}, {v(G_VL)}, {W_}, s25 offen sc1'))
        return [(c_, it, t) for c_, it in items]

    epi_done = set()
    for t in range(P1T): fill.extend(epilogue(t)); epi_done.add(t)
    PF = 5
    while p2ptr[0] < min(PF, len(p2)): p2_read()
    for n, (t, ks) in enumerate(p2):
        if ks == 0 and t >= 4:
            while any(len(x) > 2 and x[2] == t - 4 for x in fill):
                print('   warning: forced epilogue flush', t - 4)
                run_fill(1000)
        if ks == 3 and t - 1 >= P1T and (t - 1) not in epi_done:
            fill.extend(epilogue(t - 1)); epi_done.add(t - 1)
        if ks == 4 and t >= 3: w2_feed(W2_P2 + 2)
        if ks == 14 and t == 2: w2_feed(W2_P2)
        mfma(ACC[t % 4], p2regs[(t, ks)], XF + 4 * ks, ks == 0)
        p2_read()
        run_fill(16)
    st('g:p2')
    t = NFT - 1
    if t not in epi_done: fill.extend(epilogue(t))
    w2_feed(1000)
    while fill: run_fill(1000)
    st('g:end')


RES = T0
RED = T0 + 8192
D_RQ = 240
D_PF = int(os.environ.get('D_PF', 20))


def down_prep(k, stage):
    W_ = f's[{WS}:{WS + 3}]'
    xres = XT1 if stage == 0 else XT3
    k.M(f'''
    s_and_b32 s11, s6, 1
    s_lshr_b32 s12, s6, 1
    s_lshl_b32 s40, {s(S_LB)}, 1
    s_add_u32 s40, s40, s11
    s_lshl_b32 s41, {s(S_DT)}, 1
    s_add_u32 s41, s41, s12
    s_lshl_b32 s42, s41, 17
    s_lshl_b32 s43, s40, 6
    s_add_u32 s42, s42, s43
    s_add_u32 s43, s42, {xres}
    s_xor_b32 s45, s40, 1
    s_mul_i32 s44, s40, {112 * 1024}
    s_mul_i32 s45, s45, {112 * 1024}
    s_mul_i32 s46, s6, {28 * 1024}
    s_add_u32 s46, s46, {HP[stage]}
    s_add_u32 s44, s44, s46
    s_add_u32 s45, s45, s46
    s_lshl_b32 s47, s6, 11
    s_add_u32 s47, s47, {RES}
    ''')
    if stage == 0:
        k.M(f'''
        v_and_b32 v5, 31, v2
        v_lshrrev_b32 v6, 5, v2
        v_lshlrev_b32 v5, 12, v5
        v_lshl_add_u32 v5, v6, 4, v5
        buffer_load_dwordx4 {v(D_RQ, 4)}, v5, {W_}, s43 offen
        buffer_load_dwordx4 {v(D_RQ + 4, 4)}, v5, {W_}, s43 offen offset:32
        ''')
    else:
        k.M(f'''
        v_lshrrev_b32 v5, 2, v2
        v_and_b32 v6, 3, v2
        v_lshlrev_b32 v5, 12, v5
        v_lshl_add_u32 v5, v6, 4, v5
        s_mov_b32 m0, s47
        s_add_u32 s48, s43, 65536
        buffer_load_dwordx4 v5, {W_}, s43 offen lds
        s_add_u32 m0, s47, 1024
        buffer_load_dwordx4 v5, {W_}, s48 offen lds
        ''')


def down_phase(k, st, stage):
    W_ = f's[{WS}:{WS + 3}]'
    VL = 4
    PF = D_PF
    RING = 16
    ACCS = [176, 192, 208, 224]
    assert RING + 8 * PF <= 176
    RQ = D_RQ

    def acc(t): return v(ACCS[t], 16)

    def loads(s_):
        r = RING + 8 * (s_ % PF)
        if s_ % 4 == 0 and s_ > 0:
            for b in (44, 45): k.I(f's_add_u32 {s(b)}, {s(b)}, 4096')
        off = (s_ % 4) * 1024
        o = f' offset:{off}' if off else ''
        k.I(f'buffer_load_dwordx4 {v(r, 4)}, {v(VL)}, {W_}, s44 offen{o}')
        k.I(f'buffer_load_dwordx4 {v(r + 4, 4)}, {v(VL)}, {W_}, s45 offen{o}')

    for s_ in range(PF): loads(s_)
    st('d:issued')
    k.M(f'''
    v_lshrrev_b32 v5, 5, v2
    v_lshlrev_b32 v5, 2, v5
    v_bfe_u32 v6, v2, 2, 2
    v_add_u32 v5, v5, v6
    v_lshlrev_b32 v5, 6, v5
    v_bfe_u32 v6, v2, 4, 1
    v_lshl_add_u32 v5, v6, 5, v5
    v_and_b32 v6, 3, v2
    v_lshl_add_u32 v5, v6, 3, v5
    v_add_u32 v5, s47, v5
    ''')
    if stage == 0:
        for b in (0, 4):
            k.I(f'v_permlane32_swap_b32 {v(RQ + b)}, {v(RQ + b + 2)}')
            k.I(f'v_permlane32_swap_b32 {v(RQ + b + 1)}, {v(RQ + b + 3)}')
    else:
        for q in range(4):
            k.I(f'ds_read_b64_tr_b16 {v(RQ + 2 * q, 2)}, v5 offset:{q * 512}')
    WBR = [None, 8, 9, 10]
    for t in (1, 2, 3):
        k.I(f's_xor_b32 s52, s6, {t}')
        k.I(f's_mul_i32 s52, s52, {3 * 4096}')
        k.I(f's_add_u32 s52, s52, {RED + (t - 1) * 4096}')
        k.I(f'v_add_u32 {v(WBR[t])}, s52, {v(VL)}')
    k.I(f's_mul_i32 s52, s6, {3 * 4096}')
    k.I(f's_add_u32 s52, s52, {RED}')
    k.I(f'v_add_u32 v11, s52, {v(VL)}')
    for s_ in range(28):
        r = RING + 8 * (s_ % PF)
        hA, hB = v(r, 4), v(r + 4, 4)
        wA, wB = a(8 * s_, 4), a(8 * s_ + 4, 4)
        for tau, h_, w_ in ((0, hA, wA), (2, hA, wB), (1, hB, wA), (3, hB, wB)):
            c = '0' if s_ == 0 else acc(tau)
            A_, B_ = (h_, w_) if stage == 0 else (w_, h_)
            k.I(f'v_mfma_f32_32x32x16_bf16 {acc(tau)}, {A_}, {B_}, {c}')
        if s_ + PF < 28: loads(s_ + PF)
        if s_ == 0: st('d:first')
    st('d:mfma')
    for t in (1, 2, 3):
        for q in range(4):
            k.I(f'ds_write_b128 {v(WBR[t])}, {v(ACCS[t] + 4 * q, 4)} offset:{q * 1024}')
    U = RING
    for n in range(8):
        k.I(f'v_lshlrev_b32 {v(U + 2 * n)}, 16, {v(RQ + n)}')
        k.I(f'v_and_b32 {v(U + 2 * n + 1)}, 0xffff0000, {v(RQ + n)}')
    ACC0 = ACCS[0]
    for n in range(8):
        k.I(f'v_pk_add_f32 {v(ACC0 + 2 * n, 2)}, {v(ACC0 + 2 * n, 2)}, {v(U + 2 * n, 2)}')
    k.barrier()
    st('d:red')
    P = RING + 16
    for t in range(3):
        for q in range(4):
            k.I(f'ds_read_b128 {v(P + 16 * t + 4 * q, 4)}, v11 offset:{t * 4096 + q * 1024}')
    for t in range(3):
        for n in range(8):
            k.I(f'v_pk_add_f32 {v(ACC0 + 2 * n, 2)}, {v(ACC0 + 2 * n, 2)}, {v(P + 16 * t + 2 * n, 2)}')
    O = RING + 64
    for n in range(8):
        k.I(f'v_cvt_pk_bf16_f32 {v(O + n)}, {v(ACC0 + 2 * n)}, {v(ACC0 + 2 * n + 1)}')
    for b in (0, 4):
        k.I(f'v_permlane32_swap_b32 {v(O + b)}, {v(O + b + 2)}')
        k.I(f'v_permlane32_swap_b32 {v(O + b + 1)}, {v(O + b + 3)}')
    if stage == 0:
        k.M(f'''
        v_and_b32 v8, 31, v2
        v_lshrrev_b32 v6, 5, v2
        v_lshlrev_b32 v7, 12, v8
        v_lshl_add_u32 v7, v6, 4, v7
        s_add_u32 s43, s42, {XT2}
        buffer_store_dwordx4 {v(O, 4)}, v7, {W_}, s43 offen sc1
        buffer_store_dwordx4 {v(O + 4, 4)}, v7, {W_}, s43 offen offset:32 sc1
        v_lshlrev_b32 v9, 6, v8
        v_lshl_add_u32 v9, v6, 4, v9
        v_add_u32 v9, s47, v9
        ds_write_b128 v9, {v(O, 4)}
        ds_write_b128 v9, {v(O + 4, 4)} offset:32
        v_mov_b32 v9, 0x3f803f80
        v_mov_b32 v10, 0
        v_mov_b32 v11, 0
        v_lshrrev_b32 v12, 3, v8
        v_lshlrev_b32 v12, 7, v12
        v_lshl_add_u32 v12, v6, 5, v12
        v_and_b32 v13, 7, v2
        v_lshl_add_u32 v12, v13, 2, v12
        s_lshl_b32 s49, s40, 9
        s_add_u32 s49, s49, {ST3}
        ''')
        k.wait_all(vm=False)
        T = RING
        for q in range(4):
            k.I(f'ds_read_b64_tr_b16 {v(T + 2 * q, 2)}, v5 offset:{q * 512}')
        for n in range(8):
            k.I(f'v_dot2c_f32_bf16 v10, {v(T + n)}, v9')
            k.I(f'v_dot2c_f32_bf16 v11, {v(T + n)}, {v(T + n)}')
        k.I('v_permlane32_swap_b32 v10, v11')
        k.I('v_add_f32 v10, v10, v11')
        k.I(f'buffer_atomic_add_f32 v10, v12, {W_}, s49 offen sc1')
    else:
        srd(k, 24, P_OUT, L * D * 2)
        k.M(f'''
        v_and_b32 v8, 31, v2
        v_lshrrev_b32 v6, 5, v2
        v_mul_u32_u24 v7, 896, v8
        v_lshl_add_u32 v7, v6, 4, v7
        s_mul_i32 s48, s40, {32 * 896}
        s_lshl_b32 s49, s41, 6
        s_add_u32 s48, s48, s49
        buffer_store_dwordx4 {v(O, 4)}, v7, s[24:27], s48 offen
        buffer_store_dwordx4 {v(O + 4, 4)}, v7, s[24:27], s48 offen offset:32
        ''')
    st('d:stored')


def phase0_spare(k, st):
    W_ = f's[{WS}:{WS + 3}]'
    ln1_issue(k, 24)
    srd(k, 28, P_WG, D * F * 2)
    srd(k, 32, P_WU, D * F * 2)
    GB, UB = T0, T0 + 57344
    lab = k.newlabel('NOPACK')
    k.M(f'''
    s_sub_u32 s7, s2, {NCW}
    v_lshrrev_b32 v5, 3, v2
    v_and_b32 v6, 7, v2
    v_and_b32 v7, 3, v5
    v_lshlrev_b32 v7, 1, v7
    v_xor_b32 v6, v6, v7
    v_mul_u32_u24 v5, 3584, v5
    v_lshl_add_u32 v3, v6, 4, v5
    v_xor_b32 v6, 2, v6
    v_lshl_add_u32 v4, v6, 4, v5
    s_lshl_b32 s8, s7, 7
    s_mul_i32 s9, s6, {14 * 8 * 3584}
    s_add_u32 s8, s8, s9
    s_mul_i32 s9, s6, {14 * 1024}
    s_cmp_lt_u32 s7, 28
    ''')
    dmas = []
    stt = k.skip_begin('s_cbranch_scc0')
    for i in range(14):
        k.I(f's_add_u32 s10, s8, {i * 8 * 3584}')
        k.I(f's_add_u32 m0, s9, {GB + i * 1024}')
        dmas.append(k.I('buffer_load_dwordx4 v3, s[28:31], s10 offen lds'))
        k.I(f's_add_u32 m0, s9, {UB + i * 1024}')
        dmas.append(k.I('buffer_load_dwordx4 v4, s[32:35], s10 offen lds'))
    k.skip_end(stt)
    k.I('s_waitcnt lgkmcnt(0)')
    token(k)
    ln1_finish(k)
    st('s0:ln1')
    k.wait_all()
    k.I('s_barrier')
    st('s0:dma')
    k.I('s_sub_u32 s7, s2, %d' % NCW)
    k.I('s_cmp_lt_u32 s7, 28')
    k.I(f's_cbranch_scc0 {lab}')
    k.M(f'''
    v_bfe_u32 v5, v2, 2, 2
    v_lshrrev_b32 v6, 5, v2
    v_lshl_add_u32 v6, v6, 3, v5
    v_lshlrev_b32 v6, 7, v6
    v_bfe_u32 v7, v2, 1, 1
    s_lshl_b32 s8, s6, 1
    v_add_u32 v7, s8, v7
    v_lshlrev_b32 v8, 1, v5
    v_xor_b32 v7, v7, v8
    v_bfe_u32 v8, v2, 4, 1
    v_lshlrev_b32 v9, 1, v8
    v_xor_b32 v7, v7, v9
    v_lshl_add_u32 v6, v7, 4, v6
    v_and_b32 v7, 1, v2
    v_lshl_add_u32 v6, v7, 3, v6
    v_mul_u32_u24 v8, 57344, v8
    v_add_u32 v6, v6, v8
    v_add_u32 v6, {GB}, v6
    v_mov_b32 v10, 0x3f803f80
    v_mov_b32 v11, 0
    v_mov_b32 v12, 0x00003f80
    v_mov_b32 v13, 0x3f800000
    v_lshlrev_b32 v9, 4, v2
    s_lshl_b32 s8, s7, 2
    s_add_u32 s8, s8, s6
    s_mul_i32 s8, s8, 28672
    s_add_u32 s8, s8, {W1P}
    ''')
    XF = 32
    for ks in range(28):
        k.I(f'ds_read_b64_tr_b16 {v(XF + 4 * ks, 2)}, v6 offset:{ks * 2048}')
        k.I(f'ds_read_b64_tr_b16 {v(XF + 4 * ks + 2, 2)}, v6 offset:{ks * 2048 + 512}')
        if ks >= 3:
            for r in range(4): k.I(f'v_dot2c_f32_bf16 v11, {v(XF + 4 * (ks - 3) + r)}, v10')
    for ks in range(25, 28):
        for r in range(4): k.I(f'v_dot2c_f32_bf16 v11, {v(XF + 4 * ks + r)}, v10')
    k.M(f'''
    v_mov_b32 v14, v11
    v_permlane32_swap_b32 v11, v14
    v_add_f32 v11, v11, v14
    v_mul_f32 v11, {f32hex(-1.0 / D)}, v11
    ''')
    st('s0:sums')
    for ks in range(28):
        T = 144 + 8 * (ks & 1)
        O = 160 + 4 * (ks & 3)
        for r in range(4):
            k.I(f'v_dot2_f32_bf16 {v(T + 2 * r)}, {v(XF + 4 * ks + r)}, v12, v11')
            k.I(f'v_dot2_f32_bf16 {v(T + 2 * r + 1)}, {v(XF + 4 * ks + r)}, v13, v11')
        for r in range(4):
            k.I(f'v_cvt_pk_bf16_f32 {v(O + r)}, {v(T + 2 * r)}, {v(T + 2 * r + 1)}')
        if ks and ks % 4 == 0: k.I('s_add_u32 s8, s8, 4096')
        off = (ks % 4) * 1024
        k.I(f'buffer_store_dwordx4 {v(O, 4)}, v9, {W_}, s8 offen' + (f' offset:{off}' if off else '') + ' sc1')
    k.wait_all()
    k.raw(lab + ':')
    k.reset_state()
    k.I('s_nop 1')
    st('s0:packed')


def w_prefetch(k):
    k.I('v_lshlrev_b32 v4, 4, v2')
    for b in range(NWR_):
        for t in w_dma(b): k.I(t)


def join(k, lab):
    k.raw(lab + ':')
    k.reset_state()
    k.I('s_nop 7')


def build(out):
    label = NAME + '_kernel'
    k = Asm()
    st = Stamps(k)
    kernel_header(k, label)
    prologue(k, 'mega')
    st('start')
    k.I(f's_cmp_ge_u32 s2, {NCW}')
    k.I('s_cbranch_scc1 L_SPARE0')
    phase0_conv(k, st)
    conv_prep(k, 0)
    handoff(k, st, None, 1, first=True, name='h1')
    conv_phase(k, st, 0)
    glu_prep(k)
    handoff(k, st, 2, 2, name='h2')
    k.I('s_branch L_GLU1')
    k.raw('L_SPARE0:')
    k.reset_state()
    st2 = Stamps(k); st2.n = 52
    phase0_spare(k, st2)
    handoff(k, st2, 2, 1, first=True, sigfirst=True, name='s1')
    w_prefetch(k)
    glu_prep(k)
    handoff(k, st2, None, 2, name='s2')
    join(k, 'L_GLU1')
    glu_phase(k, st, 0)
    k.I(f's_cmp_ge_u32 s2, {NCW}')
    k.I('s_cbranch_scc1 L_SPARE1')
    vq = list(k.vmq)
    down_prep(k, 0)
    handoff(k, st, 3, 3, narrow=True, name='h3')
    down_phase(k, st, 0)
    conv_prep(k, 1)
    handoff(k, st, 4, 4, name='h4')
    conv_phase(k, st, 1)
    glu_prep(k)
    handoff(k, st, 5, 5, name='h5')
    k.I('s_branch L_GLU2')
    k.raw('L_SPARE1:')
    k.reset_state()
    k.I('s_waitcnt vmcnt(0) lgkmcnt(0)')
    st3 = Stamps(k); st3.n = 60
    handoff(k, st3, 5, 5, name='s5', after_sig=lambda: (w_prefetch(k), glu_prep(k), k.wait_all()))
    join(k, 'L_GLU2')
    glu_phase(k, st, 1)
    k.I(f's_cmp_ge_u32 s2, {NCW}')
    k.I('s_cbranch_scc1 L_SPARE2')
    down_prep(k, 1)
    handoff(k, st, 6, 6, narrow=True, name='h6')
    down_phase(k, st, 1)
    k.I('s_cmp_lg_u32 s2, 0')
    k.I('s_cbranch_scc1 L_END')
    k.I('s_cmp_lg_u32 s6, 0')
    k.I('s_cbranch_scc1 L_END')
    k.M(f'''
    s_add_u32 s8, {s(S_GEN)}, 1
    v_mov_b32 v8, s8
    v_mov_b32 v9, 0
    s_mov_b64 exec, 1
    s_mov_b32 s9, {GEN}
    buffer_store_dword v8, v9, s[{WS}:{WS + 3}], s9 offen sc1
    s_mov_b64 exec, -1
    s_branch L_END
    ''')
    k.raw('L_SPARE2:')
    k.reset_state()
    k.I('s_waitcnt vmcnt(0) lgkmcnt(0)')
    st4 = Stamps(k); st4.n = 62
    handoff(k, st4, 6, None, name='s6')
    k.raw('L_END:')
    k.reset_state()
    if STAMP:
        k.I('s_waitcnt vmcnt(0) lgkmcnt(0)')
        st('end'); st.flush()
        wgs = int(os.environ.get('STAMP_WG', 0))
        k.I(f's_cmp_lg_u32 s2, {wgs}')
        k.I('s_cbranch_scc1 L_END2')
        k.I('s_cmp_lg_u32 s6, %d' % int(os.environ.get('STAMP_WAVE', 0)))
        k.I('s_cbranch_scc1 L_END2')
        k.I(f's_load_dwordx2 s[4:5], s[0:1], {KA["dbg"]}')
        k.wait_all()
        srd(k, 24, 4, 256)
        k.I('v_lshlrev_b32 v8, 2, v2')
        k.I(f'buffer_store_dword {v(VSTAMP)}, v8, s[24:27], 0 offen')
        k.raw('L_END2:')
        print('stamps:', list(enumerate(st.names)))
        print('spare stamps:', [(52 + i, n) for i, n in enumerate(st2.names)], [(60 + i, n) for i, n in enumerate(st3.names)])
        import json; json.dump(st.names + [''] * (52 - len(st.names)) + st2.names + st3.names + st4.names, open(out + '.names', 'w'))
    if DBGF:
        k.I('s_waitcnt vmcnt(0) lgkmcnt(0)')
        k.I('s_cmp_lg_u32 s6, 0')
        k.I('s_cbranch_scc1 L_END3')
        k.I(f's_load_dwordx2 s[4:5], s[0:1], {KA["dbg"]}')
        k.wait_all()
        srd(k, 24, 4, 256)
        k.M(f'''
        s_and_b32 s8, {s(S_GEN)}, 15
        s_lshl_b32 s9, s63, 4
        s_or_b32 s8, s8, s9
        v_mov_b32 v8, s8
        v_mov_b32 v9, s2
        s_mov_b64 exec, 1
        buffer_store_byte v8, v9, s[24:27], 0 offen
        ''')
        k.raw('L_END3:')
    k.I('s_endpgm')
    hdr = open('cdna_kernels/' + NAME + '.s.ref').read().split('; Override launch')[0]
    txt = hdr
    txt += f'; @launch kernel={label} grid=({NWG},1,1) block=(256,1,1) lds={LDS_TOTAL}\n'
    txt += '.amdgcn_target "amdgcn-amd-amdhsa--gfx950"\n.text\n'
    txt += k.text()
    txt += '.section .rodata,"a"\n.p2align 6\n' + kernel_desc(label, 512, 256)
    open(out, 'w').write(txt)
    print('instructions', k.nins, 'bytes', len(txt), k.stats)


if __name__ == '__main__':
    build(sys.argv[1] if len(sys.argv) > 1 else 'mg.s')
```

```python
import sys, os
sys.path.insert(0, os.path.dirname(__file__))
from asmdsl import *
from common import NAME, L, D, F, NM, MB, KA, f32hex, cmul, kernel_desc, kernel_header
import common

LOG2E = 1.4426950408889634
INV2PI = 0.15915494309189535
NWG = 256
NCW = 224
FL = 0
FRS_LOG = int(os.environ.get('FRS_LOG', 10))
FLB = 0x20000
GEN = 0x40000
ST1 = 0x50000
ST3 = 0x60000
XT1, XT2, XT3 = 2 * MB, 4 * MB, 6 * MB
W1P = 8 * MB
W2P = 12 * MB
HP = [16 * MB, 24 * MB]
WS_USED = 32 * MB
KSL = 0
KS_STRIDE, KS_O = 8320, 4160
T0 = 17408
XRING, NXR = T0, 12
WRING, NWR_ = T0 + 12 * 4096, 23
LDS_TOTAL = 163840
assert WRING + NWR_ * 4096 <= LDS_TOTAL
WS = 20
P_U, P_LAR, P_AIM, P_CR, P_CI, P_LDT, P_DSK = 36, 38, 40, 42, 44, 46, 48
P_WG, P_WU, P_WD, P_OUT0 = 52, 54, 56, 58
P_OUT, S_DSK, S_GEN, TOK, FST, FPA, FPN, SPN, S_CP = 84, 86, 87, 88, 89, 90, 91, 92, 93
S_LB, S_DT = 94, 95
S_RB, S_FS = 96, 97
S_WP, S_WV, S_W1K, TOKB = 98, 99, 100, 101
VS = 248
VSTAMP = 255
SPIN_MAX = 30000
WIN = 7

STAMP = int(os.environ.get('STAMP', 0))
DBGF = int(os.environ.get('DBGF', 0))
STAMP_OP = 's_memrealtime' if STAMP == 2 else 's_memtime'
DBGR = 31 * MB


class Stamps:
    def __init__(self, k):
        self.k = k; self.pend = []; self.n = 0; self.names = []

    def __call__(self, name, wait=False):
        if not STAMP: return
        k = self.k
        if wait: k.wait_all()
        if len(self.pend) == 10: self.flush()
        i = len(self.pend)
        k.I(f'{STAMP_OP} s[{64 + 2 * i}:{65 + 2 * i}]')
        self.pend.append(self.n); self.names.append(name); self.n += 1

    def flush(self):
        if not STAMP or not self.pend: return
        k = self.k
        k.wait(lg=0)
        if not k.lgq: k.I('s_waitcnt lgkmcnt(0)')
        for i, n in enumerate(self.pend):
            assert n < 64
            k.I(f'v_writelane_b32 {v(VSTAMP)}, s{64 + 2 * i}, {n}')
        self.pend = []


def srd(k, sr, ptr, nbytes):
    k.I(f's_mov_b32 {s(sr)}, {s(ptr)}')
    k.I(f's_mov_b32 {s(sr + 1)}, {s(ptr + 1)}')
    k.I(f's_mov_b32 {s(sr + 2)}, {nbytes}')
    k.I(f's_mov_b32 {s(sr + 3)}, 0x00020000')


def emit_signal(k, p, first=False):
    k.I(f's_add_u32 {s(SPN)}, {s(TOK)}, {p}')
    k.I(f'v_mov_b32 {v(VS + 5)}, {s(SPN)}')
    k.I(f'v_lshlrev_b32 {v(VS + 4)}, {FRS_LOG}, v2')
    k.I('s_mov_b32 exec_hi, 0')
    k.I(f'buffer_store_dword {v(VS + 5)}, {v(VS + 4)}, s[{WS}:{WS + 3}], {s(FST)} offen sc1')
    if first:
        k.I(f'v_mov_b32 {v(VS + 6)}, {s(TOKB)}')
        k.I(f's_add_u32 s3, {s(FST)}, {FLB}')
        k.I(f'buffer_store_dword {v(VS + 6)}, {v(VS + 4)}, s[{WS}:{WS + 3}], s3 offen sc1')
    k.I('s_mov_b32 exec_hi, -1')


def emit_poll(k, p, narrow=False, first=False):
    k.I(f's_add_u32 s3, {s(TOK)}, {p}')
    k.I(f'v_lshlrev_b32 {v(VS + 6)}, 4, v2')
    k.I(f's_mov_b32 {s(SPN)}, {SPIN_MAX}')
    if narrow: k.I('s_mov_b64 exec, 15')
    if first: k.I(f's_add_u32 s8, {s(FPA)}, {FLB}')
    lp, dn = k.newlabel('POLL'), k.newlabel('PDONE')
    k.raw(lp + ':')
    k.I(f'buffer_load_dwordx4 {v(VS, 4)}, {v(VS + 6)}, s[{WS}:{WS + 3}], {s(FPN if narrow else FPA)} offen sc1')
    if first:
        k.I(f'buffer_load_dwordx4 {v(VS - 4, 4)}, {v(VS + 6)}, s[{WS}:{WS + 3}], s8 offen sc1')
    k.wait(vm=0)
    for i in range(4): k.I(f'v_subrev_u32 {v(VS + i)}, s3, {v(VS + i)}')
    k.I(f'v_max3_u32 {v(VS)}, {v(VS)}, {v(VS + 1)}, {v(VS + 2)}')
    if first:
        for i in range(4): k.I(f'v_xor_b32 {v(VS - 4 + i)}, {s(TOKB)}, {v(VS - 4 + i)}')
        k.I(f'v_or3_b32 {v(VS - 4)}, {v(VS - 4)}, {v(VS - 3)}, {v(VS - 2)}')
        k.I(f'v_or_b32 {v(VS - 4)}, {v(VS - 4)}, {v(VS - 1)}')
        k.I(f'v_cmp_ne_u32 vcc, 0, {v(VS - 4)}')
        k.I(f'v_cndmask_b32 {v(VS - 4)}, 0, -1, vcc')
        k.I(f'v_max_u32 {v(VS)}, {v(VS)}, {v(VS - 4)}')
    k.I(f'v_max_u32 {v(VS)}, {v(VS)}, {v(VS + 3)}')
    k.I(f'v_cmp_lt_u32 vcc, {WIN}, {v(VS)}')
    k.I('s_and_b64 exec, vcc, exec')
    k.I(f's_cbranch_scc0 {dn}')
    k.I(f's_sub_u32 {s(SPN)}, {s(SPN)}, 1')
    k.I(f's_cmp_lg_u32 {s(SPN)}, 0')
    k.I(f's_cbranch_scc1 {lp}')
    if DBGF:
        k.I('s_cmp_eq_u32 s63, 0')
        k.I(f's_cselect_b32 s63, {p}, s63')
    k.raw(dn + ':')
    k.I('s_mov_b64 exec, -1')


def wave0(k, fn):
    vq, lq = list(k.vmq), list(k.lgq)
    k.I('s_cmp_lg_u32 s6, 0')
    stt = k.skip_begin('s_cbranch_scc1')
    fn()
    k.skip_end(stt)
    k.vmq, k.lgq = vq, lq


def handoff(k, st, sig, waitp=None, narrow=False, first=False, name='', sigfirst=False, after_sig=None):
    k.wait_all()
    st(name + ':drained')
    if sig is not None: k.I('s_barrier')
    if after_sig is None:
        def body():
            if sig is not None: emit_signal(k, sig, sigfirst)
            if waitp is not None: emit_poll(k, waitp, narrow, first)
        wave0(k, body)
    else:
        if sig is not None: wave0(k, lambda: emit_signal(k, sig, sigfirst))
        after_sig()
        if waitp is not None: wave0(k, lambda: emit_poll(k, waitp, narrow, first))
    if waitp is not None: k.I('s_barrier')
    st(name + ':passed')
    st.flush()


class Rec:
    def __init__(self): self.l = []
    def I(self, t): self.l.append(t)
    def M(self, text):
        for ln in text.strip().split('\n'):
            ln = ln.strip()
            if ln: self.l.append(ln)


def interleave(k, *lists):
    n = max(len(x) for x in lists)
    for i in range(n):
        for x in lists:
            if i < len(x): k.I(x[i])


def prologue(k, label):
    k.M(f'''
    s_cmp_ge_u32 s2, {NWG}
    s_cbranch_scc0 {label}_go
    s_endpgm
    ''')
    k.raw(f'{label}_go:')
    k.M(f'''
    s_load_dwordx16 s[36:51], s[0:1], 0
    s_load_dwordx8 s[52:59], s[0:1], 64
    s_load_dwordx2 s[4:5], s[0:1], {KA['ws']}
    v_lshrrev_b32 v1, 6, v0
    v_and_b32 v2, 63, v0
    s_and_b32 s7, s2, 7
    s_lshr_b32 s8, s2, 3
    v_readfirstlane_b32 s6, v1
    s_mul_i32 {s(S_CP)}, s7, 28
    s_add_u32 {s(S_CP)}, {s(S_CP)}, s8
    s_mul_i32 s9, s8, 37
    s_lshr_b32 s9, s9, 8
    s_mul_i32 s10, s9, 7
    s_sub_u32 {s(S_DT)}, s8, s10
    s_lshl_b32 s10, s7, 2
    s_add_u32 {s(S_LB)}, s9, s10
    s_and_b32 s9, s7, 3
    s_lshl_b32 s9, s9, 2
    s_lshr_b32 s10, s8, 3
    s_add_u32 {s(S_RB)}, s9, s10
    s_lshr_b32 s9, s7, 2
    s_lshl_b32 s9, s9, 3
    s_and_b32 s10, s8, 7
    s_add_u32 {s(S_FS)}, s9, s10
    s_lshl_b32 s9, {s(S_RB)}, 4
    s_add_u32 s9, s9, {s(S_FS)}
    s_lshl_b32 {s(FST)}, s9, 2
    s_and_b32 s9, s2, 31
    s_lshl_b32 {s(FPA)}, s9, {FRS_LOG}
    s_lshr_b32 s9, {s(S_LB)}, 1
    s_lshl_b32 s9, s9, 6
    s_add_u32 {s(FPN)}, {s(FPA)}, s9
    s_lshl_b32 {s(S_W1K)}, s6, 10
    s_mul_i32 s9, {s(S_FS)}, {7 * 28672}
    s_add_u32 s9, s9, {W1P}
    s_add_u32 {s(S_WV)}, s9, {s(S_W1K)}
    s_and_b32 s10, s6, 1
    s_mul_i32 s10, s10, 28672
    s_add_u32 s9, s9, s10
    s_lshr_b32 s10, s6, 1
    s_lshl_b32 s10, s10, 10
    s_add_u32 {s(S_WP)}, s9, s10
    ''')
    assert FL == 0
    k.wait_all()
    srd(k, WS, 4, WS_USED)
    k.I(f's_load_dword {s(S_GEN)}, s[4:5], {GEN}')
    k.I(f's_mov_b32 {s(P_OUT)}, {s(P_OUT0)}')
    k.I(f's_mov_b32 {s(P_OUT + 1)}, {s(P_OUT0 + 1)}')
    if STAMP: k.I(f'v_mov_b32 {v(VSTAMP)}, 0')
    if DBGF: k.I('s_mov_b32 s63, 0')


def token(k):
    k.I(f's_mul_i32 {s(TOK)}, {s(S_GEN)}, 0x9E3779B1')
    k.I(f's_add_u32 {s(TOK)}, {s(TOK)}, 0x7F4A7C15')
    k.I(f's_mul_i32 {s(TOKB)}, {s(S_GEN)}, 0x85EBCA6B')
    k.I(f's_add_u32 {s(TOKB)}, {s(TOKB)}, 0xC2B2AE35')


LN_RAW, LN_S = 216, 223


def ln1_issue(k, sr):
    srd(k, sr, P_U, L * D * 2)
    k.M(f'''
    v_lshrrev_b32 v225, 5, v0
    v_mul_u32_u24 v225, 896, v225
    v_and_b32 v224, 31, v0
    v_mul_u32_u24 v224, 28, v224
    v_add_u32 v225, v225, v224
    s_mul_i32 s7, s2, {8 * 896}
    buffer_load_dwordx4 {v(LN_RAW, 4)}, v225, s[{sr}:{sr + 3}], s7 offen
    buffer_load_dwordx3 {v(LN_RAW + 4, 3)}, v225, s[{sr}:{sr + 3}], s7 offen offset:16
    ''')


def ln1_finish(k):
    a_, b_ = LN_S, LN_S + 1
    k.M(f'''
    v_mov_b32 {v(a_)}, 0
    v_mov_b32 {v(b_)}, 0
    v_mov_b32 v225, 0x3f803f80
    ''')
    for j in range(7):
        k.I(f'v_dot2c_f32_bf16 {v(a_)}, {v(LN_RAW + j)}, v225')
        k.I(f'v_dot2c_f32_bf16 {v(b_)}, {v(LN_RAW + j)}, {v(LN_RAW + j)}')
    for pat in ('quad_perm:[1,0,3,2]', 'quad_perm:[2,3,0,1]', 'row_half_mirror', 'row_mirror'):
        for r in (a_, b_):
            k.I(f'v_add_f32_dpp {v(r)}, {v(r)}, {v(r)} {pat} row_mask:0xf bank_mask:0xf')
    for r in (a_, b_):
        k.I(f'v_add_f32_dpp {v(r)}, {v(r)}, {v(r)} row_bcast:15 row_mask:0xa bank_mask:0xf')
    k.M(f'''
    v_lshrrev_b32 v225, 5, v0
    v_lshlrev_b32 v225, 2, v225
    s_lshl_b32 s7, s2, 7
    s_add_u32 s8, s7, {ST1}
    s_mov_b32 exec_lo, 0x80000000
    s_mov_b32 exec_hi, 0x80000000
    buffer_store_dword {v(a_)}, v225, s[{WS}:{WS + 3}], s8 offen sc1
    buffer_store_dword {v(b_)}, v225, s[{WS}:{WS + 3}], s8 offen offset:32 sc1
    s_mov_b64 exec, -1
    ''')
    k.M(f'''
    v_mov_b32 {v(LN_RAW)}, 0
    v_lshlrev_b32 {v(LN_RAW + 1)}, 2, v2
    s_add_u32 s8, s7, {ST3}
    s_cmp_lg_u32 s6, 0
    ''')
    stt = k.skip_begin('s_cbranch_scc1')
    k.I('s_mov_b64 exec, 0xffff')
    k.I(f'buffer_atomic_swap {v(LN_RAW)}, {v(LN_RAW + 1)}, s[{WS}:{WS + 3}], s8 offen sc1')
    k.I('s_mov_b64 exec, -1')
    k.skip_end(stt)


W2_RAW, W2_O = 226, 234


def w2_issue(k, sr):
    srd(k, sr, P_WD, F * D * 2)
    k.M(f'''
    v_lshlrev_b32 v242, 2, v0
    s_lshr_b32 s7, s2, 1
    s_lshl_b32 s7, s7, 4
    s_and_b32 s8, s2, 1
    s_lshl_b32 s8, s8, 2
    s_add_u32 s7, s7, s8
    s_mul_i32 s7, s7, 896
    ''')
    for sl in range(8):
        frow = 8 * (sl >> 2) + (sl & 3)
        k.I(f's_add_u32 s8, s7, {frow * 896}')
        k.I(f'buffer_load_dword {v(W2_RAW + sl)}, v242, s[{sr}:{sr + 3}], s8 offen')


def w2_finish(k):
    k.M(f'''
    v_mov_b32 v243, 0x05040100
    v_mov_b32 v244, 0x07060302
    v_lshrrev_b32 v242, 4, v0
    v_mul_u32_u24 v242, 114688, v242
    v_and_b32 v245, 15, v0
    v_lshl_add_u32 v242, v245, 5, v242
    s_lshl_b32 s7, s2, 9
    s_add_u32 s7, s7, {W2P}
    ''')
    for j in range(4):
        a_, b_ = W2_RAW + 2 * j, W2_RAW + 2 * j + 1
        k.I(f'v_perm_b32 {v(W2_O + j)}, {v(b_)}, {v(a_)}, v243')
        k.I(f'v_perm_b32 {v(W2_O + 4 + j)}, {v(b_)}, {v(a_)}, v244')
    k.I('v_cmp_gt_u32 vcc, 224, v0')
    k.I('s_and_saveexec_b64 s[8:9], vcc')
    k.I(f'buffer_store_dwordx4 {v(W2_O, 4)}, v242, s[{WS}:{WS + 3}], s7 offen sc1')
    k.I(f'buffer_store_dwordx4 {v(W2_O + 4, 4)}, v242, s[{WS}:{WS + 3}], s7 offen offset:16 sc1')
    k.I('s_mov_b64 exec, -1')


KG_ROWS = T0
KG_PART = T0 + 2 * 36864
KG_TAB = T0
X0RAW = 208


def kgen_a(c):
    k = Rec()
    R = 100 * c
    RO = c * 36864
    r = lambda i, n=1: v(i + R, n)
    if c == 0: k.I(f'v_lshlrev_b32 {r(10)}, 16, v206')
    else: k.I(f'v_and_b32 {r(10)}, 0xffff0000, v206')
    k.M(f'''
    v_mul_f32 {r(10)}, {f32hex(LOG2E)}, {r(10)}
    v_exp_f32 {r(10)}, {r(10)}
    v_lshlrev_b32 {r(11)}, 16, {r(11)}
    v_mul_f32 {r(11)}, {f32hex(LOG2E)}, {r(11)}
    v_exp_f32 {r(11)}, {r(11)}
    v_cvt_pk_bf16_f32 {r(8)}, {r(10)}, {r(11)}
    v_lshlrev_b32 {r(10)}, 16, {r(8)}
    v_and_b32 {r(11)}, 0xffff0000, {r(8)}
    v_lshlrev_b32 {r(12)}, 16, {r(12)}
    v_lshlrev_b32 {r(13)}, 16, {r(13)}
    v_lshlrev_b32 {r(14)}, 16, {r(14)}
    v_mul_f32 {r(11)}, {r(11)}, {r(10)}
    v_mul_f32 {r(12)}, {r(12)}, {r(10)}
    v_mul_f32 {r(11)}, {f32hex(-LOG2E)}, {r(11)}
    v_mul_f32 {r(12)}, {f32hex(INV2PI)}, {r(12)}
    v_mul_f32 {r(13)}, {r(13)}, {r(10)}
    v_mul_f32 {r(14)}, {r(14)}, {r(10)}
    ''')
    W = {e: 16 + 2 * e + R for e in range(1, 9)}
    W128 = 36 + R
    C2 = 38 + R
    k.M(f'''
    v_add_f32 v{C2}, {r(13)}, {r(13)}
    v_add_f32 v{C2 + 1}, {r(14)}, {r(14)}
    v_exp_f32 {r(8)}, {r(11)}
    v_fract_f32 {r(9)}, {r(12)}
    v_cos_f32 v{W[1]}, {r(9)}
    v_sin_f32 v{W[1] + 1}, {r(9)}
    v_mul_f32 {r(15)}, 0x43000000, {r(11)}
    v_mul_f32 {r(16)}, 0x43000000, {r(12)}
    v_exp_f32 {r(15)}, {r(15)}
    v_fract_f32 {r(16)}, {r(16)}
    v_mul_f32 v{W[1]}, v{W[1]}, {r(8)}
    v_mul_f32 v{W[1] + 1}, v{W[1] + 1}, {r(8)}
    v_cos_f32 v{W128}, {r(16)}
    v_sin_f32 v{W128 + 1}, {r(16)}
    v_mul_f32 v{W128}, v{W128}, {r(15)}
    v_mul_f32 v{W128 + 1}, v{W128 + 1}, {r(15)}
    ''')
    cmul(k, W[2], W[1], W[1])
    cmul(k, W[4], W[2], W[2])
    cmul(k, W[3], W[2], W[1])
    cmul(k, W[8], W[4], W[4])
    cmul(k, W[5], W[4], W[1])
    cmul(k, W[6], W[3], W[3])
    cmul(k, W[7], W[4], W[3])
    tmpi = [0]

    def put_row(row, pair, neg):
        t = 8 + R + (tmpi[0] & 1)
        tmpi[0] += 1
        k.I(f'v_cvt_pk_bf16_f32 {v(t)}, {v(pair)}, {"-" if neg else ""}{v(pair + 1)}')
        k.I(f'ds_write_b32 v5, {v(t)} offset:{RO + row * 288}')

    LO = {1: W[8]}
    for b in range(2, 9): LO[b] = 40 + R + 2 * (b - 2)
    T = [54 + R, 56 + R]
    k.I(f'v_mov_b32 {r(8)}, 0x3f80')
    k.I(f'ds_write_b32 v5, {r(8)} offset:{RO}')
    tmpi[0] = 1
    put_row(1, LO[1], True)
    for b in range(2, 9):
        if b % 2 == 0: cmul(k, LO[b], LO[b // 2], LO[b // 2])
        else:
            hb = 1 << (b.bit_length() - 1)
            cmul(k, LO[b], LO[hb], LO[b - hb])
        put_row(b, LO[b], True)
    for b in range(9, 16):
        t = T[b & 1]
        if b % 2 == 0: cmul(k, t, LO[b // 2], LO[b // 2])
        else: cmul(k, t, LO[8], LO[b - 8])
        put_row(b, t, True)
    BF = 60 + R
    for ks in range(4):
        k.I(f'ds_read_b128 {v(BF + 4 * ks, 4)}, v6 offset:{RO + ks * 64}')
    AF = 76 + R
    DT = 92 + R
    H = [40 + R, 42 + R]

    def tile_mfma(t):
        for ks in range(4):
            k.I(f'ds_read_b128 {v(AF + 4 * ks, 4)}, v6 offset:{RO + 16 * 288 + ks * 64}')
        for ks in range(4):
            c_ = '0' if ks == 0 else v(DT + 4 * t, 4)
            k.I(f'v_mfma_f32_16x16x32_bf16 {v(DT + 4 * t, 4)}, {v(AF + 4 * ks, 4)}, {v(BF + 4 * ks, 4)}, {c_}')

    def row_mul(row, h, e):
        if e == 0:
            put_row(16 + row, h, False)
        else:
            t = T[row & 1]
            cmul(k, t, h, W[e])
            put_row(16 + row, t, False)

    for e in range(8): row_mul(e, C2, e)
    cur = [H[0]]
    cmul(k, cur[0], C2, W128)
    for e in range(8): row_mul(8 + e, cur[0], e)
    tile_mfma(0)
    hi = [0]

    def step():
        hi[0] ^= 1
        cmul(k, H[hi[0]], cur[0], W128)
        cur[0] = H[hi[0]]

    step()
    for e in range(4): row_mul(e, cur[0], 2 * e)
    step()
    for e in range(4): row_mul(4 + e, cur[0], 2 * e)
    for a_ in range(4):
        step()
        for e in range(2): row_mul(8 + 2 * a_ + e, cur[0], 4 * e)
    tile_mfma(1)
    for a_ in range(9):
        step()
        row_mul(a_, cur[0], 0)
    tile_mfma(2)
    for t in range(3):
        k.I(f'ds_write_b128 v7, {v(DT + 4 * t, 4)} offset:{c * 12288 + t * 1024}')
    return k.l


def phase0_conv(k, st):
    PB = D * NM * 2
    k.M(f'''
    v_lshlrev_b32 v3, 1, v0
    v_mov_b32 v4, 0
    s_lshl_b32 s7, {s(S_CP)}, 10
    s_add_u32 s8, s7, 512
    s_lshl_b32 s9, {s(S_CP)}, 2
    ''')
    srd(k, 24, P_LDT, D * 2)
    k.I('buffer_load_dword v206, v4, s[24:27], s9 offen')
    for i, (ptr, reg) in enumerate(((P_LAR, 11), (P_AIM, 12), (P_CR, 13), (P_CI, 14))):
        sr = 28 if i & 1 == 0 else 32
        srd(k, sr, ptr, PB)
        k.I(f'buffer_load_ushort {v(reg)}, v3, s[{sr}:{sr + 3}], s7 offen')
        k.I(f'buffer_load_ushort {v(reg + 100)}, v3, s[{sr}:{sr + 3}], s8 offen')
    k.I(f's_load_dword {s(S_DSK)}, s[{P_DSK}:{P_DSK + 1}], s9')
    ln1_issue(k, 24)
    w2_issue(k, 28)
    k.M(f'''
    s_mul_i32 s19, s6, 9216
    s_add_u32 s19, s19, {KG_ROWS}
    v_lshlrev_b32 v5, 2, v2
    v_add_u32 v5, s19, v5
    v_and_b32 v6, 15, v2
    v_mul_u32_u24 v6, 288, v6
    v_lshrrev_b32 v7, 4, v2
    v_lshl_add_u32 v6, v7, 4, v6
    v_add_u32 v6, s19, v6
    s_mul_i32 s19, s6, 3072
    s_add_u32 s19, s19, {KG_PART}
    v_lshlrev_b32 v7, 4, v2
    v_add_u32 v7, s19, v7
    ''')
    token(k)
    st('p0:issued')
    ln1_finish(k)
    st('p0:ln1')
    w2_finish(k)
    last_store = k.vmq[-1]
    st('p0:w2')
    srd(k, 32, P_U, L * D * 2)
    k.I(f's_lshl_b32 s9, {s(S_CP)}, 2')
    k.I(f'v_mul_u32_u24 v207, {8 * 896}, v0')
    for j in range(8):
        if j < 4:
            k.I(f'buffer_load_dword {v(X0RAW + j)}, v207, s[32:35], s9 offen offset:{j * 896}')
        else:
            if j == 4: k.I(f's_add_u32 s10, s9, {4 * 896}')
            k.I(f'buffer_load_dword {v(X0RAW + j)}, v207, s[32:35], s10 offen offset:{(j - 4) * 896}')
    interleave(k, kgen_a(0), kgen_a(1))
    st('p0:tiles')
    k.wait_op(last_store)
    k.wait_all(vm=False)
    k.I('s_barrier')
    wave0(k, lambda: emit_signal(k, 1, True))
    st('p0:sig1')
    k.I('v_lshlrev_b32 v7, 2, v0')
    k.I(f'v_add_u32 v7, {KG_PART}, v7')
    for c in range(2):
        for t in range(3):
            for w in range(4):
                k.I(f'ds_read_b32 {v(40 + 100 * c + 4 * t + w)}, v7 offset:{c * 12288 + w * 3072 + t * 1024}')
    k.M('''
    v_and_b32 v8, 3, v0
    v_bfe_u32 v9, v0, 2, 4
    s_lshr_b32 s19, s6, 1
    s_lshl_b32 s19, s19, 7
    s_and_b32 s18, s6, 1
    s_lshl_b32 s18, s18, 2
    s_add_u32 s19, s19, s18
    v_lshl_add_u32 v10, v9, 3, v8
    v_add_u32 v10, s19, v10
    v_lshl_add_u32 v11, v9, 2, v8
    s_lshl_b32 s19, s6, 6
    s_add_u32 s19, s19, 256
    v_add_u32 v11, s19, v11
    v_and_b32 v12, 1, v8
    v_lshrrev_b32 v13, 1, v8
    v_lshl_add_u32 v12, v13, 5, v12
    v_lshl_add_u32 v12, v9, 1, v12
    v_add_u32 v12, s19, v12
    s_cmp_lt_u32 s6, 2
    s_cselect_b64 vcc, -1, 0
    v_cndmask_b32 v11, v12, v11, vcc
    v_lshl_add_u32 v12, v8, 4, v9
    s_lshl_b32 s19, s6, 6
    s_add_u32 s19, s19, 512
    v_add_u32 v12, s19, v12
    v_lshlrev_b32 v10, 2, v10
    v_lshlrev_b32 v11, 2, v11
    v_lshlrev_b32 v12, 2, v12
    ''')
    for c in range(2):
        for t in range(3):
            b = 40 + 100 * c + 4 * t
            k.I(f'v_add_f32 {v(b)}, {v(b)}, {v(b + 1)}')
            k.I(f'v_add_f32 {v(b + 2)}, {v(b + 2)}, {v(b + 3)}')
            k.I(f'v_add_f32 {v(b)}, {v(b)}, {v(b + 2)}')
    for c in range(2):
        for t in range(3):
            k.I(f'ds_write_b32 {v(10 + t)}, {v(40 + 100 * c + 4 * t)} offset:{KG_TAB + c * 4096}')
    k.M(f'''
    v_mov_b32 v13, 0
    v_mov_b32 v14, 3072
    ds_write_b32 v14, v13 offset:{KG_TAB}
    ds_write_b32 v14, v13 offset:{KG_TAB + 4096}
    v_lshlrev_b32 v15, 3, v0
    v_sub_u32 v15, 2047, v15
    v_cvt_f32_u32 v16, v15
    v_mov_b32 v17, 0x43000000
    v_cmp_le_u32 vcc, 240, v0
    v_cndmask_b32 v18, 0, v17, vcc
    v_add_f32 v16, v16, v18
    v_mov_b32 v19, 0xfffef600
    v_mov_b32 v20, 0xfffef400
    v_cndmask_b32 v19, v19, v20, vcc
    ''')
    for e in range(8):
        if e == 0: k.I('v_mov_b32 v22, v16')
        else: k.I(f'v_add_f32 {v(22 + e)}, {f32hex(-float(e))}, v16')
    k.M('''
    v_cvt_f32_u32 v30, v15
    v_add_f32 v30, 0xc1000000, v30
    v_cmp_le_u32 vcc, 239, v0
    v_cndmask_b32 v18, 0, v17, vcc
    v_add_f32 v30, v30, v18
    v_mov_b32 v21, 0xfffef600
    v_cndmask_b32 v21, v21, v20, vcc
    ''')
    for j in range(4):
        k.I(f'v_cvt_pk_bf16_f32 {v(32 + j)}, {v(22 + 2 * j)}, {v(23 + 2 * j)}')
    k.I('v_cvt_pk_bf16_f32 v36, v30, v30')
    for e in range(8):
        sel = '[1,0,0,0]' if e & 1 else '[0,0,0,0]'
        k.I(f'v_mad_u32_u16 {v(22 + e)}, {v(32 + e // 2)}, 4, v19 op_sel:{sel}')
    k.I('v_mad_u32_u16 v30, v36, 4, v21 op_sel:[0,0,0,0]')
    k.M('''
    v_cmp_eq_u32 vcc, 255, v0
    v_cndmask_b32 v30, v30, v14, vcc
    ''')
    k.barrier()
    st('p0:table')
    for c in range(2):
        for e in range(9):
            k.I(f'ds_read_b32 {v(40 + 100 * c + e)}, {v(22 + e)} offset:{KG_TAB + c * 4096}')
    k.I('v_lshlrev_b32 v7, 4, v0')
    for c in range(2):
        R = 100 * c
        for j in range(4):
            k.I(f'v_cvt_pk_bf16_f32 {v(52 + R + j)}, {v(40 + R + 2 * j)}, {v(41 + R + 2 * j)}')
        for j in range(4):
            k.I(f'v_cvt_pk_bf16_f32 {v(56 + R + j)}, {v(41 + R + 2 * j)}, {v(42 + R + 2 * j)}')
        k.I(f'ds_write_b128 v7, {v(52 + R, 4)} offset:{KSL + c * KS_STRIDE}')
        k.I(f'ds_write_b128 v7, {v(56 + R, 4)} offset:{KSL + c * KS_STRIDE + KS_O}')
    k.M('''
    v_mov_b32 v60, 0
    v_mov_b32 v61, 0
    v_mov_b32 v62, 0
    v_mov_b32 v63, 0
    v_add_u32 v8, 4096, v7
    v_add_u32 v9, 8192, v7
    v_cmp_le_u32 vcc, 4, v0
    v_cndmask_b32 v8, v8, v9, vcc
    s_cmp_lg_u32 s6, 0
    ''')
    stt = k.skip_begin('s_cbranch_scc1')
    k.I('s_mov_b64 exec, 0xff')
    k.I(f'ds_write_b128 v8, v[60:63] offset:{KSL}')
    k.I(f'ds_write_b128 v8, v[60:63] offset:{KSL + KS_STRIDE}')
    k.I('s_mov_b64 exec, -1')
    k.skip_end(stt)
    st('p0:kdone')


def wblocks():
    bl = [('P', i) for i in range(14)]
    for t in range(2, 7):
        for q in range(7): bl.append(('V', t, q))
    return bl


def w_dma(b, tmp='s18'):
    blk = wblocks()[b]
    slot = b % NWR_
    out = [f's_add_u32 m0, {s(S_W1K)}, {WRING + slot * 4096}']
    if blk[0] == 'P':
        out.append(f's_add_u32 {tmp}, {s(S_WP)}, {blk[1] * 2048}')
    else:
        out.append(f's_add_u32 {tmp}, {s(S_WV)}, {blk[1] * 28672 + blk[2] * 4096}')
    out.append(f'buffer_load_dwordx4 v4, s[{WS}:{WS + 3}], {tmp} offen lds')
    return out


UL = T0
UST = 4608
PL = UL + 2 * UST
PW, PT = 9216, 1152
CX, CS1, CS2 = 8, 16, 24
CAB, CBB = 36, 40


def round_pair(k, d0, d1, s0, s1, tmp):
    k.I(f'v_cvt_pk_bf16_f32 {v(tmp)}, {v(s0)}, {v(s1)}')
    k.I(f'v_lshlrev_b32 {v(d0)}, 16, {v(tmp)}')
    k.I(f'v_and_b32 {v(d1)}, 0xffff0000, {v(tmp)}')


def ln_stats(k, S1, S2, n, tmp):
    c = f32hex(1.0 / D)
    for i in range(n):
        k.I(f'v_mul_f32 {v(S1 + i)}, {c}, {v(S1 + i)}')
        k.I(f'v_mul_f32 {v(S2 + i)}, {c}, {v(S2 + i)}')
    for i in range(n):
        k.I(f'v_fma_f32 {v(S2 + i)}, -{v(S1 + i)}, {v(S1 + i)}, {v(S2 + i)}')
        k.I(f'v_max_f32 {v(S2 + i)}, 0, {v(S2 + i)}')
    for i in range(0, n, 2):
        round_pair(k, S1 + i, S1 + i + 1, S1 + i, S1 + i + 1, tmp)
        round_pair(k, S2 + i, S2 + i + 1, S2 + i, S2 + i + 1, tmp + 1)
    for i in range(n):
        k.I(f'v_add_f32 {v(S2 + i)}, {f32hex(1e-5)}, {v(S2 + i)}')
    for i in range(0, n, 2):
        round_pair(k, S2 + i, S2 + i + 1, S2 + i, S2 + i + 1, tmp + ((i >> 1) & 1))
    for i in range(n):
        k.I(f'v_sqrt_f32 {v(S2 + i)}, {v(S2 + i)}')
    for i in range(0, n, 2):
        round_pair(k, S2 + i, S2 + i + 1, S2 + i, S2 + i + 1, tmp + ((i >> 1) & 1))
    for i in range(n):
        k.I(f'v_rcp_f32 {v(S2 + i)}, {v(S2 + i)}')
    for i in range(n):
        k.I(f'v_mul_f32 {v(S1 + i)}, -{v(S1 + i)}, {v(S2 + i)}')


def conv_prep(k, stage):
    if stage == 0:
        k.I('v_mov_b32 v32, 0x05040100')
        k.I('v_mov_b32 v33, 0x07060302')
        for j in range(4):
            k.I(f'v_perm_b32 {v(CX + j)}, {v(X0RAW + 2 * j + 1)}, {v(X0RAW + 2 * j)}, v32')
            k.I(f'v_perm_b32 {v(CX + 4 + j)}, {v(X0RAW + 2 * j + 1)}, {v(X0RAW + 2 * j)}, v33')
    k.M(f'''
    v_lshlrev_b32 v3, 4, v0
    v_lshlrev_b32 v4, 4, v2
    v_lshlrev_b32 v5, 7, v0
    v_and_b32 v6, 15, v2
    v_lshrrev_b32 v7, 4, v2
    s_and_b32 s17, s6, 1
    s_lshr_b32 s18, s6, 1
    v_lshlrev_b32 v32, 1, v6
    v_sub_u32 v33, {2 * 2031 - 4032}, v32
    v_sub_u32 v34, {KS_O + 2 * 2030 - 4032}, v32
    v_and_b32 v35, 1, v6
    v_cmp_eq_u32 vcc, 1, v35
    v_cndmask_b32 v33, v34, v33, vcc
    v_lshl_add_u32 v33, v7, 4, v33
    s_mul_i32 s19, s17, {KS_STRIDE}
    s_lshl_b32 s24, s18, 8
    s_sub_u32 s19, s19, s24
    s_add_u32 s19, s19, {KSL + 256}
    v_add_u32 {v(CAB)}, s19, v33
    v_add_u32 {v(CAB + 1)}, 1024, {v(CAB)}
    v_add_u32 {v(CAB + 2)}, 2048, {v(CAB)}
    v_add_u32 {v(CAB + 3)}, 3072, {v(CAB)}
    v_lshlrev_b32 v32, 5, v6
    v_lshl_add_u32 v32, v7, 4, v32
    s_mul_i32 s19, s17, {UST}
    s_sub_u32 s19, s19, s24
    s_add_u32 s19, s19, {UL + 288}
    v_add_u32 {v(CBB)}, s19, v32
    ''')


def conv_phase(k, st, stage):
    xin = None if stage == 0 else XT2
    xout = XT1 if stage == 0 else XT3
    sto = ST1 if stage == 0 else ST3
    W_ = f's[{WS}:{WS + 3}]'
    k.M(f'''
    s_lshl_b32 s11, {s(S_CP)}, 13
    s_mov_b32 s13, {sto}
    buffer_load_dwordx4 {v(CS1, 4)}, v5, {W_}, s13 offen
    buffer_load_dwordx4 {v(CS2, 4)}, v5, {W_}, s13 offen offset:32
    buffer_load_dwordx4 {v(CS1 + 4, 4)}, v5, {W_}, s13 offen offset:16
    buffer_load_dwordx4 {v(CS2 + 4, 4)}, v5, {W_}, s13 offen offset:48
    ''')
    if stage == 1:
        k.M(f'''
        s_add_u32 s14, s11, {xin}
        s_add_u32 s15, s11, {xin + 4096}
        buffer_load_dwordx4 {v(CX, 4)}, v3, {W_}, s14 offen
        buffer_load_dwordx4 {v(CX + 4, 4)}, v3, {W_}, s15 offen
        ''')
    k.M(f'''
    v_mov_b32 v32, 0
    v_mov_b32 v33, 0
    v_mov_b32 v34, 0
    v_mov_b32 v35, 0
    v_and_b32 v6, 31, v0
    v_lshlrev_b32 v6, 4, v6
    ds_write_b128 v6, v[32:35] offset:{UL}
    ds_write_b128 v6, v[32:35] offset:{UL + UST}
    s_add_u32 s11, s11, {xout}
    s_add_u32 s12, s11, 4096
    s_lshl_b32 s37, {s(S_DSK)}, 16
    s_and_b32 s38, {s(S_DSK)}, 0xffff0000
    ''')
    st('cv:issued')
    ln_stats(k, CS1, CS2, 8, 32)
    st('cv:stats')
    U = 44
    T = 52
    S1, S2, X = CS1, CS2, CX
    for ch in range(2):
        for j in range(4):
            x = X + 4 * ch + j
            t0, t1 = T + 2 * (j & 1) + 4 * (ch & 1), T + 2 * (j & 1) + 1 + 4 * (ch & 1)
            k.I(f'v_lshlrev_b32 {v(t0)}, 16, {v(x)}')
            k.I(f'v_and_b32 {v(t1)}, 0xffff0000, {v(x)}')
            k.I(f'v_fma_f32 {v(t0)}, {v(t0)}, {v(S2 + 2 * j)}, {v(S1 + 2 * j)}')
            k.I(f'v_fma_f32 {v(t1)}, {v(t1)}, {v(S2 + 2 * j + 1)}, {v(S1 + 2 * j + 1)}')
            k.I(f'v_cvt_pk_bf16_f32 {v(U + 4 * ch + j)}, {v(t0)}, {v(t1)}')
        k.I(f'ds_write_b128 v3, {v(U + 4 * ch, 4)} offset:{UL + ch * UST + 512}')
    k.barrier()
    st('cv:u')
    ACC = 64
    AF = [96, 128]
    BF = [160, 192]

    def frag_loads(rr, buf):
        out = []
        def aload(c):
            j = (7 - c) >> 1
            o = 128 * ((7 - c) & 1) + 16 * (3 - rr)
            out.append(f'ds_read2_b32 {v(AF[buf] + 4 * c, 2)}, {v(CAB + j)} offset0:{o} offset1:{o + 1}')
            out.append(f'ds_read2_b32 {v(AF[buf] + 4 * c + 2, 2)}, {v(CAB + j)} offset0:{o + 2} offset1:{o + 3}')
        def bload(tau):
            out.append(f'ds_read_b128 {v(BF[buf] + 4 * tau, 4)}, {v(CBB)} offset:{512 * tau + 64 * (3 - rr)}')
        aload(0)
        for tau in range(8): bload(tau)
        for c in range(1, 8): aload(c)
        return out

    for t in frag_loads(0, 0): k.I(t)
    wq = list(range(NWR_))
    for rr in range(4):
        buf = rr & 1
        nxt = frag_loads(rr + 1, buf ^ 1) if rr < 3 else []
        cnt = 0
        for c in range(8):
            for tau in range(8 - c):
                t = tau + c
                src = '0' if (rr == 0 and c == 0) else v(ACC + 4 * t, 4)
                k.I(f'v_mfma_f32_16x16x32_bf16 {v(ACC + 4 * t, 4)}, {v(AF[buf] + 4 * c, 4)}, {v(BF[buf] + 4 * tau, 4)}, {src}')
                if nxt and cnt < 24:
                    k.I(nxt.pop(0))
                elif wq and (cnt & 1) == 0 and (rr < 3 or cnt < 24):
                    for x_ in w_dma(wq.pop(0)): k.I(x_)
                cnt += 1
        assert not nxt
    assert not wq
    st('cv:mfma')
    k.M(f'''
    v_lshrrev_b32 v6, 5, v2
    v_lshlrev_b32 v6, 7, v6
    v_add_u32 v6, v6, v4
    s_mul_i32 s19, s6, {PW}
    v_add_u32 v6, s19, v6
    ''')
    for t in range(8):
        k.I(f'ds_write_b128 v6, {v(ACC + 4 * t, 4)} offset:{PL + t * PT}')
    k.M(f'''
    v_lshrrev_b32 v7, 5, v0
    v_mul_u32_u24 v7, {PT}, v7
    v_bfe_u32 v32, v0, 1, 4
    v_lshl_add_u32 v7, v32, 4, v7
    v_and_b32 v32, 1, v0
    v_mul_u32_u24 v32, 640, v32
    v_add_u32 v7, v7, v32
    ''')
    k.barrier()
    Y = 96
    for ch in range(2):
        for hf in range(2):
            for e in range(2):
                k.I(f'ds_read_b128 {v(Y + 16 * ch + 8 * hf + 4 * e, 4)}, v7 offset:{PL + (ch + 2 * hf) * PW + 256 * e}')
    O = 128
    for ch in range(2):
        dsk = s(37 + ch)
        for j in range(4):
            y0, y1 = Y + 16 * ch + 2 * j, Y + 16 * ch + 2 * j + 1
            t0, t1, t2, t3 = T, T + 1, T + 2, T + 3
            if j & 1: t0, t1, t2, t3 = T + 4, T + 5, T + 6, T + 7
            k.I(f'v_add_f32 {v(y0)}, {v(y0)}, {v(y0 + 8)}')
            k.I(f'v_add_f32 {v(y1)}, {v(y1)}, {v(y1 + 8)}')
            k.I(f'v_lshlrev_b32 {v(t0)}, 16, {v(U + 4 * ch + j)}')
            k.I(f'v_and_b32 {v(t1)}, 0xffff0000, {v(U + 4 * ch + j)}')
            k.I(f'v_lshlrev_b32 {v(t2)}, 16, {v(X + 4 * ch + j)}')
            k.I(f'v_and_b32 {v(t3)}, 0xffff0000, {v(X + 4 * ch + j)}')
            k.I(f'v_fma_f32 {v(y0)}, {v(t0)}, {dsk}, {v(y0)}')
            k.I(f'v_fma_f32 {v(y1)}, {v(t1)}, {dsk}, {v(y1)}')
            k.I(f'v_add_f32 {v(y0)}, {v(y0)}, {v(t2)}')
            k.I(f'v_add_f32 {v(y1)}, {v(y1)}, {v(t3)}')
            k.I(f'v_cvt_pk_bf16_f32 {v(O + 4 * ch + j)}, {v(y0)}, {v(y1)}')
        k.I(f'buffer_store_dwordx4 {v(O + 4 * ch, 4)}, v3, {W_}, {s(11 + ch)} offen sc1')
    st('cv:stored')


G_VX, G_VL = 3, 4
G_VT, G_VW = 12, (8, 9)


def glu_prep(k):
    k.M(f'''
    v_lshrrev_b32 v5, 4, v2
    v_and_b32 v6, 15, v2
    v_lshlrev_b32 v7, 2, v5
    v_xor_b32 v6, v6, v7
    v_lshlrev_b32 v6, 4, v6
    s_lshl_b32 s12, s6, 2
    v_add_u32 v7, s12, v5
    v_lshlrev_b32 v7, 12, v7
    v_add_u32 {v(G_VX)}, v6, v7
    v_lshlrev_b32 {v(G_VL)}, 4, v2
    v_lshrrev_b32 v16, 5, v2
    v_lshlrev_b32 v16, 3, v16
    v_bfe_u32 v17, v2, 2, 2
    v_add_u32 v16, v16, v17
    v_lshlrev_b32 v16, 8, v16
    v_bfe_u32 v18, v2, 4, 1
    v_lshlrev_b32 v18, 1, v18
    v_bfe_u32 v19, v2, 1, 1
    v_add_u32 v18, v18, v19
    v_add_u32 v18, s12, v18
    v_lshlrev_b32 v17, 2, v17
    v_xor_b32 v18, v18, v17
    v_lshl_add_u32 v16, v18, 4, v16
    v_and_b32 v19, 1, v2
    v_lshl_add_u32 {v(G_VT)}, v19, 3, v16
    v_add_u32 {v(G_VT)}, {XRING}, {v(G_VT)}
    v_add_u32 {v(G_VW[0])}, {WRING}, {v(G_VL)}
    v_add_u32 {v(G_VW[1])}, {WRING + 65536}, {v(G_VL)}
    ''')


def glu_phase(k, st, stage):
    xin = XT1 if stage == 0 else XT3
    hp = HP[stage]
    W_ = f's[{WS}:{WS + 3}]'
    NFT, P1T = 7, 2
    WB = wblocks()
    blocks = [('X', j) for j in range(28)] + WB
    NB = len(blocks)
    bidx = {b: i for i, b in enumerate(blocks)}
    XN = 28
    epoch = {}
    for j in range(28): epoch[j] = j // 4
    for i in range(len(WB)):
        epoch[XN + i] = -1 if i < NWR_ else 7 + (i - NWR_) // 4
    k.M(f'''
    s_lshl_b32 s13, {s(S_RB)}, 8
    s_add_u32 s13, s13, {xin}
    v_mov_b32 v16, 0x3f803f80
    v_mov_b32 v17, 0
    v_mov_b32 v18, 0
    s_lshl_b32 s19, {s(S_RB)}, 2
    s_add_u32 s19, s19, s6
    s_mul_i32 s19, s19, {112 * 1024}
    s_mul_i32 s24, {s(S_FS)}, {NFT * 1024}
    s_add_u32 s19, s19, s24
    s_add_u32 s19, s19, {hp}
    ''')
    dma = {}
    nreads = {i: (2 if blocks[i][0] == 'X' else 4) for i in range(NB)}
    reads = {i: [] for i in range(NB)}
    stt = dict(nx=0, nw=NWR_, synced=-1, free=set())

    def dma_instrs(b):
        if b < XN:
            slot = b % NXR
            return [f's_add_u32 m0, {s(S_W1K)}, {XRING + slot * 4096}',
                    f's_add_u32 s18, s13, {b * 65536}',
                    f'buffer_load_dwordx4 {v(G_VX)}, {W_}, s18 offen lds']
        return w_dma(b - XN)

    def issue(b):
        for t in dma_instrs(b): h = k.I(t)
        dma[b] = h

    for b in range(NXR): issue(b)
    stt['nx'] = NXR

    ONES, S1, S2, C1, SD, TMP = 16, 17, 18, 19, 20, 21
    HO = [24, 28]
    XF = 32
    WR = 144
    NWR = 8
    ACC = [176, 192, 208, 224]

    fill = []
    isdma = lambda x: isinstance(x[1], tuple) and x[1][0] == 'dma'

    def try_queue_dma():
        new = []
        while stt['nx'] < XN and (stt['nx'] - NXR) in stt['free']:
            new.append((12, ('dma', stt['nx']))); stt['nx'] += 1
        while stt['nw'] < len(WB) and (XN + stt['nw'] - NWR_) in stt['free']:
            new.append((12, ('dma', XN + stt['nw']))); stt['nw'] += 1
        pos = sum(1 for x in fill if isdma(x))
        fill.sort(key=lambda x: 0 if isdma(x) else 1)
        fill[pos:pos] = new

    def flush_dma_for(e):
        i = 0
        while i < len(fill):
            it = fill[i][1]
            if isdma(fill[i]) and epoch[it[1]] <= e:
                issue(it[1]); fill.pop(i)
                print('   warning: late DMA', it[1])
            else:
                i += 1

    def sync(e):
        flush_dma_for(e)
        ops = [dma[b] for b in range(NB) if epoch[b] == e]
        k.barrier(vm_ops=ops, lg=False)
        stt['synced'] = e
        for b in range(NB):
            if len(reads[b]) == nreads[b] and not any(r in k.lgq for r in reads[b]):
                stt['free'].add(b)
        try_queue_dma()

    def rd(b, text):
        while epoch[b] > stt['synced']:
            sync(stt['synced'] + 1)
        reads[b].append(k.I(text))

    def rd_x(j):
        b = j
        for half in range(2):
            off = (b % NXR) * 4096 + half * 1024
            yield lambda b=b, off=off, half=half: rd(b, f'ds_read_b64_tr_b16 {v(XF + 4 * j + 2 * half, 2)}, {v(G_VT)} offset:{off}')

    wcount = [0]

    def rd_w(b, frag):
        r = WR + 4 * (wcount[0] % NWR)
        wcount[0] += 1
        a_ = ((b - XN) % NWR_) * 4096 + frag * 1024
        hi, off = a_ >> 16, a_ & 0xffff
        return r, (lambda: rd(b, f'ds_read_b128 {v(r, 4)}, {v(G_VW[hi])} offset:{off}'))

    def run_fill(budget):
        while fill and budget > 0:
            c, it = fill[0][:2]
            if c > budget + 4: break
            fill.pop(0)
            if isinstance(it, tuple):
                if it[0] == 'dma': issue(it[1])
                else:
                    for t in it[1]: k.I(t)
            else:
                k.I(it)
            budget -= c

    def mfma(acc, wr, xf, first):
        c = '0' if first else v(acc, 16)
        k.I(f'v_mfma_f32_32x32x16_bf16 {v(acc, 16)}, {v(wr, 4)}, {v(xf, 4)}, {c}')

    w2q = []
    if stage == 0:
        k.M(f'''
        s_lshl_b32 s26, {s(S_DT)}, 1
        s_lshr_b32 s27, s6, 1
        s_add_u32 s26, s26, s27
        s_xor_b32 s27, s26, 1
        s_mul_i32 s26, s26, {112 * 1024}
        s_mul_i32 s27, s27, {112 * 1024}
        s_mul_i32 s28, s6, {28 * 1024}
        s_add_u32 s28, s28, {W2P}
        s_add_u32 s26, s26, s28
        s_add_u32 s27, s27, s28
        ''')
        for s_ in range(28):
            for half in range(2):
                it = []
                if s_ % 4 == 0 and s_ > 0: it.append(f's_add_u32 s{26 + half}, s{26 + half}, 4096')
                off = (s_ % 4) * 1024
                it.append(f'buffer_load_dwordx4 {a(8 * s_ + 4 * half, 4)}, {v(G_VL)}, {W_}, s{26 + half} offen' + (f' offset:{off}' if off else ''))
                w2q.append((12, ('grp', it)))

    def w2_feed(n):
        for _ in range(n):
            if w2q: fill.append(w2q.pop(0))

    def group_reads(i):
        bP = bidx[('P', i)]
        th, wr = [], []
        xs = list(rd_x(2 * i)) + list(rd_x(2 * i + 1))
        for f in range(4):
            r, t = rd_w(bP, f)
            wr.append(r); th.append(t)
        order = [th[0], xs[0], xs[1], th[1], th[2], xs[2], xs[3], th[3]]
        return wr, order

    st('g:issued')
    wr_cur, th = group_reads(0)
    for t in th: t()
    st('g:first')
    p2 = []
    for t in range(P1T, NFT):
        for ks in range(28): p2.append((t, ks))
    p2regs = {}
    p2ptr = [0]

    def p2_read():
        if p2ptr[0] >= len(p2): return
        t, ks = p2[p2ptr[0]]
        p2ptr[0] += 1
        r, th_ = rd_w(bidx[('V', t, ks >> 2)], ks & 3)
        p2regs[(t, ks)] = r
        th_()

    W2_P1, W2_P2 = int(os.environ.get('W2_P1', 1)), int(os.environ.get('W2_P2', 9))
    for i in range(14):
        if i < 13:
            wr_nxt, th = group_reads(i + 1)
        else:
            wr_nxt, th = None, [p2_read] * 4
        if i >= 3: w2_feed(W2_P1)
        for m in range(4):
            ks = 2 * i + (m >> 1)
            mfma(ACC[m & 1], wr_cur[m], XF + 4 * ks, ks == 0)
            n = 2 if i < 13 else 1
            for _ in range(n): th.pop(0)()
            run_fill(24 - 8 * n)
        for ks in (2 * i, 2 * i + 1):
            for r in range(4):
                k.I(f'v_dot2c_f32_bf16 {v(S1)}, {v(XF + 4 * ks + r)}, {v(ONES)}')
                k.I(f'v_dot2c_f32_bf16 {v(S2)}, {v(XF + 4 * ks + r)}, {v(XF + 4 * ks + r)}')
        wr_cur = wr_nxt
    st('g:p1')
    c = f32hex(1.0 / D)
    fin = [f'v_mov_b32 {v(TMP)}, {v(S1)}', f'v_mov_b32 {v(TMP + 1)}, {v(S2)}',
           f'v_permlane32_swap_b32 {v(S1)}, {v(TMP)}', f'v_permlane32_swap_b32 {v(S2)}, {v(TMP + 1)}',
           f'v_add_f32 {v(S1)}, {v(S1)}, {v(TMP)}', f'v_add_f32 {v(S2)}, {v(S2)}, {v(TMP + 1)}',
           f'v_mul_f32 {v(S1)}, {c}, {v(S1)}', f'v_mul_f32 {v(S2)}, {c}, {v(S2)}',
           f'v_fma_f32 {v(S2)}, -{v(S1)}, {v(S1)}, {v(S2)}',
           f'v_max_f32 {v(S2)}, 0, {v(S2)}',
           f'v_cvt_pk_bf16_f32 {v(TMP)}, {v(S2)}, {v(S2)}',
           f'v_lshlrev_b32 {v(S2)}, 16, {v(TMP)}',
           f'v_add_f32 {v(S2)}, {f32hex(1e-5)}, {v(S2)}',
           f'v_cvt_pk_bf16_f32 {v(TMP)}, {v(S2)}, {v(S2)}',
           f'v_lshlrev_b32 {v(S2)}, 16, {v(TMP)}',
           f'v_sqrt_f32 {v(S2)}, {v(S2)}',
           f'v_cvt_pk_bf16_f32 {v(TMP)}, {v(S2)}, {v(S2)}',
           f'v_lshlrev_b32 {v(SD)}, 16, {v(TMP)}',
           f'v_rcp_f32 {v(C1)}, {v(SD)}',
           f'v_mul_f32 {v(C1)}, {f32hex(-LOG2E)}, {v(C1)}']
    for t in fin: fill.append((8 if ('sqrt' in t or 'rcp' in t) else 4, t))

    def epilogue(t):
        A = ACC[t % 4]
        ho = HO[t & 1]
        items = []
        for i in range(8): items.append((4, f'v_mul_f32 {v(A + i)}, {v(A + i)}, {v(C1)}'))
        for i in range(8): items.append((8, f'v_exp_f32 {v(A + i)}, {v(A + i)}'))
        for i in range(8): items.append((4, f'v_fma_f32 {v(A + i)}, {v(A + i)}, {v(SD)}, {v(SD)}'))
        for i in range(8): items.append((8, f'v_rcp_f32 {v(A + i)}, {v(A + i)}'))
        for i in range(8): items.append((4, f'v_mul_f32 {v(A + 8 + i)}, {v(A + 8 + i)}, {v(A + i)}'))
        for i in range(4): items.append((4, f'v_cvt_pk_bf16_f32 {v(ho + i)}, {v(A + 8 + 2 * i)}, {v(A + 9 + 2 * i)}'))
        items.append((4, f's_add_u32 s25, s19, {t * 1024}'))
        items.append((8, f'buffer_store_dwordx4 {v(ho, 4)}, {v(G_VL)}, {W_}, s25 offen sc1'))
        return [(c_, it, t) for c_, it in items]

    epi_done = set()
    for t in range(P1T): fill.extend(epilogue(t)); epi_done.add(t)
    PF = 5
    while p2ptr[0] < min(PF, len(p2)): p2_read()
    for n, (t, ks) in enumerate(p2):
        if ks == 0 and t >= 4:
            while any(len(x) > 2 and x[2] == t - 4 for x in fill):
                print('   warning: forced epilogue flush', t - 4)
                run_fill(1000)
        if ks == 3 and t - 1 >= P1T and (t - 1) not in epi_done:
            fill.extend(epilogue(t - 1)); epi_done.add(t - 1)
        if ks == 4 and t >= 3: w2_feed(W2_P2 + 2)
        if ks == 14 and t == 2: w2_feed(W2_P2)
        mfma(ACC[t % 4], p2regs[(t, ks)], XF + 4 * ks, ks == 0)
        p2_read()
        run_fill(16)
    st('g:p2')
    t = NFT - 1
    if t not in epi_done: fill.extend(epilogue(t))
    w2_feed(1000)
    while fill: run_fill(1000)
    st('g:end')


RES = T0
RED = T0 + 8192
D_RQ = 240
D_PF = int(os.environ.get('D_PF', 20))


def down_prep(k, stage):
    W_ = f's[{WS}:{WS + 3}]'
    xres = XT1 if stage == 0 else XT3
    k.M(f'''
    s_and_b32 s11, s6, 1
    s_lshr_b32 s12, s6, 1
    s_lshl_b32 s40, {s(S_LB)}, 1
    s_add_u32 s40, s40, s11
    s_lshl_b32 s41, {s(S_DT)}, 1
    s_add_u32 s41, s41, s12
    s_lshl_b32 s42, s41, 17
    s_lshl_b32 s43, s40, 6
    s_add_u32 s42, s42, s43
    s_add_u32 s43, s42, {xres}
    s_xor_b32 s45, s40, 1
    s_mul_i32 s44, s40, {112 * 1024}
    s_mul_i32 s45, s45, {112 * 1024}
    s_mul_i32 s46, s6, {28 * 1024}
    s_add_u32 s46, s46, {HP[stage]}
    s_add_u32 s44, s44, s46
    s_add_u32 s45, s45, s46
    s_lshl_b32 s47, s6, 11
    s_add_u32 s47, s47, {RES}
    ''')
    if stage == 0:
        k.M(f'''
        v_and_b32 v5, 31, v2
        v_lshrrev_b32 v6, 5, v2
        v_lshlrev_b32 v5, 12, v5
        v_lshl_add_u32 v5, v6, 4, v5
        buffer_load_dwordx4 {v(D_RQ, 4)}, v5, {W_}, s43 offen
        buffer_load_dwordx4 {v(D_RQ + 4, 4)}, v5, {W_}, s43 offen offset:32
        ''')
    else:
        k.M(f'''
        v_lshrrev_b32 v5, 2, v2
        v_and_b32 v6, 3, v2
        v_lshlrev_b32 v5, 12, v5
        v_lshl_add_u32 v5, v6, 4, v5
        s_mov_b32 m0, s47
        s_add_u32 s48, s43, 65536
        buffer_load_dwordx4 v5, {W_}, s43 offen lds
        s_add_u32 m0, s47, 1024
        buffer_load_dwordx4 v5, {W_}, s48 offen lds
        ''')


def down_phase(k, st, stage):
    W_ = f's[{WS}:{WS + 3}]'
    VL = 4
    PF = D_PF
    RING = 16
    ACCS = [176, 192, 208, 224]
    assert RING + 8 * PF <= 176
    RQ = D_RQ

    def acc(t): return v(ACCS[t], 16)

    def loads(s_):
        r = RING + 8 * (s_ % PF)
        if s_ % 4 == 0 and s_ > 0:
            for b in (44, 45): k.I(f's_add_u32 {s(b)}, {s(b)}, 4096')
        off = (s_ % 4) * 1024
        o = f' offset:{off}' if off else ''
        k.I(f'buffer_load_dwordx4 {v(r, 4)}, {v(VL)}, {W_}, s44 offen{o}')
        k.I(f'buffer_load_dwordx4 {v(r + 4, 4)}, {v(VL)}, {W_}, s45 offen{o}')

    for s_ in range(PF): loads(s_)
    st('d:issued')
    k.M(f'''
    v_lshrrev_b32 v5, 5, v2
    v_lshlrev_b32 v5, 2, v5
    v_bfe_u32 v6, v2, 2, 2
    v_add_u32 v5, v5, v6
    v_lshlrev_b32 v5, 6, v5
    v_bfe_u32 v6, v2, 4, 1
    v_lshl_add_u32 v5, v6, 5, v5
    v_and_b32 v6, 3, v2
    v_lshl_add_u32 v5, v6, 3, v5
    v_add_u32 v5, s47, v5
    ''')
    if stage == 0:
        for b in (0, 4):
            k.I(f'v_permlane32_swap_b32 {v(RQ + b)}, {v(RQ + b + 2)}')
            k.I(f'v_permlane32_swap_b32 {v(RQ + b + 1)}, {v(RQ + b + 3)}')
    else:
        for q in range(4):
            k.I(f'ds_read_b64_tr_b16 {v(RQ + 2 * q, 2)}, v5 offset:{q * 512}')
    WBR = [None, 8, 9, 10]
    for t in (1, 2, 3):
        k.I(f's_xor_b32 s52, s6, {t}')
        k.I(f's_mul_i32 s52, s52, {3 * 4096}')
        k.I(f's_add_u32 s52, s52, {RED + (t - 1) * 4096}')
        k.I(f'v_add_u32 {v(WBR[t])}, s52, {v(VL)}')
    k.I(f's_mul_i32 s52, s6, {3 * 4096}')
    k.I(f's_add_u32 s52, s52, {RED}')
    k.I(f'v_add_u32 v11, s52, {v(VL)}')
    for s_ in range(28):
        r = RING + 8 * (s_ % PF)
        hA, hB = v(r, 4), v(r + 4, 4)
        wA, wB = a(8 * s_, 4), a(8 * s_ + 4, 4)
        for tau, h_, w_ in ((0, hA, wA), (2, hA, wB), (1, hB, wA), (3, hB, wB)):
            c = '0' if s_ == 0 else acc(tau)
            A_, B_ = (h_, w_) if stage == 0 else (w_, h_)
            k.I(f'v_mfma_f32_32x32x16_bf16 {acc(tau)}, {A_}, {B_}, {c}')
        if s_ + PF < 28: loads(s_ + PF)
        if s_ == 0: st('d:first')
    st('d:mfma')
    for t in (1, 2, 3):
        for q in range(4):
            k.I(f'ds_write_b128 {v(WBR[t])}, {v(ACCS[t] + 4 * q, 4)} offset:{q * 1024}')
    U = RING
    for n in range(8):
        k.I(f'v_lshlrev_b32 {v(U + 2 * n)}, 16, {v(RQ + n)}')
        k.I(f'v_and_b32 {v(U + 2 * n + 1)}, 0xffff0000, {v(RQ + n)}')
    ACC0 = ACCS[0]
    for n in range(8):
        k.I(f'v_pk_add_f32 {v(ACC0 + 2 * n, 2)}, {v(ACC0 + 2 * n, 2)}, {v(U + 2 * n, 2)}')
    k.barrier()
    st('d:red')
    P = RING + 16
    for t in range(3):
        for q in range(4):
            k.I(f'ds_read_b128 {v(P + 16 * t + 4 * q, 4)}, v11 offset:{t * 4096 + q * 1024}')
    for t in range(3):
        for n in range(8):
            k.I(f'v_pk_add_f32 {v(ACC0 + 2 * n, 2)}, {v(ACC0 + 2 * n, 2)}, {v(P + 16 * t + 2 * n, 2)}')
    O = RING + 64
    for n in range(8):
        k.I(f'v_cvt_pk_bf16_f32 {v(O + n)}, {v(ACC0 + 2 * n)}, {v(ACC0 + 2 * n + 1)}')
    for b in (0, 4):
        k.I(f'v_permlane32_swap_b32 {v(O + b)}, {v(O + b + 2)}')
        k.I(f'v_permlane32_swap_b32 {v(O + b + 1)}, {v(O + b + 3)}')
    if stage == 0:
        k.M(f'''
        v_and_b32 v8, 31, v2
        v_lshrrev_b32 v6, 5, v2
        v_lshlrev_b32 v7, 12, v8
        v_lshl_add_u32 v7, v6, 4, v7
        s_add_u32 s43, s42, {XT2}
        buffer_store_dwordx4 {v(O, 4)}, v7, {W_}, s43 offen sc1
        buffer_store_dwordx4 {v(O + 4, 4)}, v7, {W_}, s43 offen offset:32 sc1
        v_lshlrev_b32 v9, 6, v8
        v_lshl_add_u32 v9, v6, 4, v9
        v_add_u32 v9, s47, v9
        ds_write_b128 v9, {v(O, 4)}
        ds_write_b128 v9, {v(O + 4, 4)} offset:32
        v_mov_b32 v9, 0x3f803f80
        v_mov_b32 v10, 0
        v_mov_b32 v11, 0
        v_lshrrev_b32 v12, 3, v8
        v_lshlrev_b32 v12, 7, v12
        v_lshl_add_u32 v12, v6, 5, v12
        v_and_b32 v13, 7, v2
        v_lshl_add_u32 v12, v13, 2, v12
        s_lshl_b32 s49, s40, 9
        s_add_u32 s49, s49, {ST3}
        ''')
        k.wait_all(vm=False)
        T = RING
        for q in range(4):
            k.I(f'ds_read_b64_tr_b16 {v(T + 2 * q, 2)}, v5 offset:{q * 512}')
        for n in range(8):
            k.I(f'v_dot2c_f32_bf16 v10, {v(T + n)}, v9')
            k.I(f'v_dot2c_f32_bf16 v11, {v(T + n)}, {v(T + n)}')
        k.I('v_permlane32_swap_b32 v10, v11')
        k.I('v_add_f32 v10, v10, v11')
        k.I(f'buffer_atomic_add_f32 v10, v12, {W_}, s49 offen sc1')
    else:
        srd(k, 24, P_OUT, L * D * 2)
        k.M(f'''
        v_and_b32 v8, 31, v2
        v_lshrrev_b32 v6, 5, v2
        v_mul_u32_u24 v7, 896, v8
        v_lshl_add_u32 v7, v6, 4, v7
        s_mul_i32 s48, s40, {32 * 896}
        s_lshl_b32 s49, s41, 6
        s_add_u32 s48, s48, s49
        buffer_store_dwordx4 {v(O, 4)}, v7, s[24:27], s48 offen
        buffer_store_dwordx4 {v(O + 4, 4)}, v7, s[24:27], s48 offen offset:32
        ''')
    st('d:stored')


def phase0_spare(k, st):
    W_ = f's[{WS}:{WS + 3}]'
    ln1_issue(k, 24)
    srd(k, 28, P_WG, D * F * 2)
    srd(k, 32, P_WU, D * F * 2)
    GB, UB = T0, T0 + 57344
    lab = k.newlabel('NOPACK')
    k.M(f'''
    s_sub_u32 s7, s2, {NCW}
    v_lshrrev_b32 v5, 3, v2
    v_and_b32 v6, 7, v2
    v_and_b32 v7, 3, v5
    v_lshlrev_b32 v7, 1, v7
    v_xor_b32 v6, v6, v7
    v_mul_u32_u24 v5, 3584, v5
    v_lshl_add_u32 v3, v6, 4, v5
    v_xor_b32 v6, 2, v6
    v_lshl_add_u32 v4, v6, 4, v5
    s_lshl_b32 s8, s7, 7
    s_mul_i32 s9, s6, {14 * 8 * 3584}
    s_add_u32 s8, s8, s9
    s_mul_i32 s9, s6, {14 * 1024}
    s_cmp_lt_u32 s7, 28
    ''')
    dmas = []
    stt = k.skip_begin('s_cbranch_scc0')
    for i in range(14):
        k.I(f's_add_u32 s10, s8, {i * 8 * 3584}')
        k.I(f's_add_u32 m0, s9, {GB + i * 1024}')
        dmas.append(k.I('buffer_load_dwordx4 v3, s[28:31], s10 offen lds'))
        k.I(f's_add_u32 m0, s9, {UB + i * 1024}')
        dmas.append(k.I('buffer_load_dwordx4 v4, s[32:35], s10 offen lds'))
    k.skip_end(stt)
    k.I('s_waitcnt lgkmcnt(0)')
    token(k)
    ln1_finish(k)
    st('s0:ln1')
    k.wait_all()
    k.I('s_barrier')
    st('s0:dma')
    k.I('s_sub_u32 s7, s2, %d' % NCW)
    k.I('s_cmp_lt_u32 s7, 28')
    k.I(f's_cbranch_scc0 {lab}')
    k.M(f'''
    v_bfe_u32 v5, v2, 2, 2
    v_lshrrev_b32 v6, 5, v2
    v_lshl_add_u32 v6, v6, 3, v5
    v_lshlrev_b32 v6, 7, v6
    v_bfe_u32 v7, v2, 1, 1
    s_lshl_b32 s8, s6, 1
    v_add_u32 v7, s8, v7
    v_lshlrev_b32 v8, 1, v5
    v_xor_b32 v7, v7, v8
    v_bfe_u32 v8, v2, 4, 1
    v_lshlrev_b32 v9, 1, v8
    v_xor_b32 v7, v7, v9
    v_lshl_add_u32 v6, v7, 4, v6
    v_and_b32 v7, 1, v2
    v_lshl_add_u32 v6, v7, 3, v6
    v_mul_u32_u24 v8, 57344, v8
    v_add_u32 v6, v6, v8
    v_add_u32 v6, {GB}, v6
    v_mov_b32 v10, 0x3f803f80
    v_mov_b32 v11, 0
    v_mov_b32 v12, 0x00003f80
    v_mov_b32 v13, 0x3f800000
    v_lshlrev_b32 v9, 4, v2
    s_lshl_b32 s8, s7, 2
    s_add_u32 s8, s8, s6
    s_mul_i32 s8, s8, 28672
    s_add_u32 s8, s8, {W1P}
    ''')
    XF = 32
    for ks in range(28):
        k.I(f'ds_read_b64_tr_b16 {v(XF + 4 * ks, 2)}, v6 offset:{ks * 2048}')
        k.I(f'ds_read_b64_tr_b16 {v(XF + 4 * ks + 2, 2)}, v6 offset:{ks * 2048 + 512}')
        if ks >= 3:
            for r in range(4): k.I(f'v_dot2c_f32_bf16 v11, {v(XF + 4 * (ks - 3) + r)}, v10')
    for ks in range(25, 28):
        for r in range(4): k.I(f'v_dot2c_f32_bf16 v11, {v(XF + 4 * ks + r)}, v10')
    k.M(f'''
    v_mov_b32 v14, v11
    v_permlane32_swap_b32 v11, v14
    v_add_f32 v11, v11, v14
    v_mul_f32 v11, {f32hex(-1.0 / D)}, v11
    ''')
    st('s0:sums')
    for ks in range(28):
        T = 144 + 8 * (ks & 1)
        O = 160 + 4 * (ks & 3)
        for r in range(4):
            k.I(f'v_lshlrev_b32 {v(T + 2 * r)}, 16, {v(XF + 4 * ks + r)}')
            k.I(f'v_and_b32 {v(T + 2 * r + 1)}, 0xffff0000, {v(XF + 4 * ks + r)}')
        for r in range(8):
            k.I(f'v_add_f32 {v(T + r)}, {v(T + r)}, v11')
        for r in range(4):
            k.I(f'v_cvt_pk_bf16_f32 {v(O + r)}, {v(T + 2 * r)}, {v(T + 2 * r + 1)}')
        if ks and ks % 4 == 0: k.I('s_add_u32 s8, s8, 4096')
        off = (ks % 4) * 1024
        k.I(f'buffer_store_dwordx4 {v(O, 4)}, v9, {W_}, s8 offen' + (f' offset:{off}' if off else '') + ' sc1')
    k.wait_all()
    k.raw(lab + ':')
    k.reset_state()
    k.I('s_nop 1')
    st('s0:packed')


def w_prefetch(k):
    k.I('v_lshlrev_b32 v4, 4, v2')
    for b in range(NWR_):
        for t in w_dma(b): k.I(t)


def join(k, lab):
    k.raw(lab + ':')
    k.reset_state()
    k.I('s_nop 7')


def build(out):
    label = NAME + '_kernel'
    k = Asm()
    st = Stamps(k)
    kernel_header(k, label)
    prologue(k, 'mega')
    st('start'); st.flush()
    k.I(f's_cmp_ge_u32 s2, {NCW}')
    k.I('s_cbranch_scc1 L_SPARE0')
    phase0_conv(k, st)
    conv_prep(k, 0)
    handoff(k, st, None, 1, first=True, name='h1')
    conv_phase(k, st, 0)
    glu_prep(k)
    handoff(k, st, 2, 2, name='h2')
    k.I('s_branch L_GLU1')
    k.raw('L_SPARE0:')
    k.reset_state()
    st2 = Stamps(k); st2.n = 52
    phase0_spare(k, st2)
    handoff(k, st2, 2, 1, first=True, sigfirst=True, name='s1')
    w_prefetch(k)
    glu_prep(k)
    handoff(k, st2, None, 2, name='s2')
    join(k, 'L_GLU1')
    glu_phase(k, st, 0)
    k.I(f's_cmp_ge_u32 s2, {NCW}')
    k.I('s_cbranch_scc1 L_SPARE1')
    vq = list(k.vmq)
    down_prep(k, 0)
    handoff(k, st, 3, 3, narrow=True, name='h3')
    down_phase(k, st, 0)
    conv_prep(k, 1)
    handoff(k, st, 4, 4, name='h4')
    conv_phase(k, st, 1)
    glu_prep(k)
    handoff(k, st, 5, 5, name='h5')
    k.I('s_branch L_GLU2')
    k.raw('L_SPARE1:')
    k.reset_state()
    k.I('s_waitcnt vmcnt(0) lgkmcnt(0)')
    st3 = Stamps(k); st3.n = 60
    handoff(k, st3, 5, 5, name='s5', after_sig=lambda: (w_prefetch(k), glu_prep(k), k.wait_all()))
    join(k, 'L_GLU2')
    glu_phase(k, st, 1)
    k.I(f's_cmp_ge_u32 s2, {NCW}')
    k.I('s_cbranch_scc1 L_SPARE2')
    down_prep(k, 1)
    handoff(k, st, 6, 6, narrow=True, name='h6')
    down_phase(k, st, 1)
    k.I('s_cmp_lg_u32 s2, 0')
    k.I('s_cbranch_scc1 L_END')
    k.I('s_cmp_lg_u32 s6, 0')
    k.I('s_cbranch_scc1 L_END')
    k.M(f'''
    s_add_u32 s8, {s(S_GEN)}, 1
    v_mov_b32 v8, s8
    v_mov_b32 v9, 0
    s_mov_b64 exec, 1
    s_mov_b32 s9, {GEN}
    buffer_store_dword v8, v9, s[{WS}:{WS + 3}], s9 offen sc1
    s_mov_b64 exec, -1
    s_branch L_END
    ''')
    k.raw('L_SPARE2:')
    k.reset_state()
    k.I('s_waitcnt vmcnt(0) lgkmcnt(0)')
    st4 = Stamps(k); st4.n = 62
    handoff(k, st4, 6, None, name='s6')
    k.raw('L_END:')
    k.reset_state()
    if STAMP:
        k.I('s_waitcnt vmcnt(0) lgkmcnt(0)')
        st('end'); st.flush()
        k.I('s_cmp_lg_u32 s6, %d' % int(os.environ.get('STAMP_WAVE', 0)))
        k.I('s_cbranch_scc1 L_END2')
        k.I('v_lshlrev_b32 v8, 2, v2')
        k.I('s_lshl_b32 s8, s2, 8')
        k.I(f's_add_u32 s8, s8, {DBGR}')
        k.I(f'buffer_store_dword {v(VSTAMP)}, v8, s[{WS}:{WS + 3}], s8 offen')
        k.raw('L_END2:')
        print('stamps:', list(enumerate(st.names)))
        print('spare stamps:', [(52 + i, n) for i, n in enumerate(st2.names)], [(60 + i, n) for i, n in enumerate(st3.names)])
        import json; json.dump(st.names + [''] * (52 - len(st.names)) + st2.names + st3.names + st4.names, open(out + '.names', 'w'))
    if DBGF:
        k.I('s_waitcnt vmcnt(0) lgkmcnt(0)')
        k.I('s_cmp_lg_u32 s6, 0')
        k.I('s_cbranch_scc1 L_END3')
        k.I(f's_load_dwordx2 s[4:5], s[0:1], {KA["dbg"]}')
        k.wait_all()
        srd(k, 24, 4, 256)
        k.M(f'''
        s_and_b32 s8, {s(S_GEN)}, 15
        s_lshl_b32 s9, s63, 4
        s_or_b32 s8, s8, s9
        v_mov_b32 v8, s8
        v_mov_b32 v9, s2
        s_mov_b64 exec, 1
        buffer_store_byte v8, v9, s[24:27], 0 offen
        ''')
        k.raw('L_END3:')
    k.I('s_endpgm')
    hdr = open('cdna_kernels/' + NAME + '.s.ref').read().split('; Override launch')[0]
    txt = hdr
    txt += f'; @launch kernel={label} grid=({NWG},1,1) block=(256,1,1) lds={LDS_TOTAL}\n'
    txt += '.amdgcn_target "amdgcn-amd-amdhsa--gfx950"\n.text\n'
    txt += k.text()
    txt += '.section .rodata,"a"\n.p2align 6\n' + kernel_desc(label, 512, 256)
    open(out, 'w').write(txt)
    print('instructions', k.nins, 'bytes', len(txt), k.stats)


if __name__ == '__main__':
    build(sys.argv[1] if len(sys.argv) > 1 else 'mg.s')
```

```python
import sys, os
sys.path.insert(0, os.path.dirname(__file__))
from asmdsl import *
from common import NAME, L, D, F, NM, MB, KA, f32hex, cmul, kernel_desc, kernel_header
import common

LOG2E = 1.4426950408889634
INV2PI = 0.15915494309189535
NWG = 256
NCW = 224
FL = 0
FRS_LOG = int(os.environ.get('FRS_LOG', 10))
FLB = 0x20000
GEN = 0x40000
ST1 = 0x50000
ST3 = 0x60000
CSO = 0x70000
XT1, XT2, XT3 = 2 * MB, 4 * MB, 6 * MB
XT0 = 14 * MB
W1P = 8 * MB
W2P = 12 * MB
HP = [16 * MB, 24 * MB]
WS_USED = 32 * MB
KSL = 0
KS_STRIDE, KS_O = 8320, 4160
T0 = 17408
XRING, NXR = T0, 12
WRING, NWR_ = T0 + 12 * 4096, 23
LDS_TOTAL = 163840
assert WRING + NWR_ * 4096 <= LDS_TOTAL
WS = 20
P_U, P_LAR, P_AIM, P_CR, P_CI, P_LDT, P_DSK = 36, 38, 40, 42, 44, 46, 48
P_WG, P_WU, P_WD, P_OUT0 = 52, 54, 56, 58
P_OUT, S_DSK, S_GEN, TOK, FST, FPA, FPN, SPN, S_CP = 84, 86, 87, 88, 89, 90, 91, 92, 93
S_LB, S_DT = 94, 95
S_RB, S_FS = 96, 97
S_WP, S_WV, S_W1K, TOKB = 98, 99, 100, 101
VS = 248
VSTAMP = 255
SPIN_MAX = 30000
WIN = 7

STAMP = int(os.environ.get('STAMP', 0))
DBGF = int(os.environ.get('DBGF', 0))
STAMP_OP = 's_memrealtime' if STAMP == 2 else 's_memtime'
DBGR = 31 * MB


SKIP_STAMPS = set(os.environ.get('NOST', 'd:red,g:issued,cv:issued,d:first,p0:table,i:par,i:ln1,i:xk,i:pk').split(','))


class Stamps:
    def __init__(self, k):
        self.k = k; self.pend = []; self.n = 0; self.names = []

    def __call__(self, name, wait=False):
        if not STAMP: return
        if name in SKIP_STAMPS: return
        k = self.k
        if wait: k.wait_all()
        if len(self.pend) == 10: self.flush()
        i = len(self.pend)
        k.I(f'{STAMP_OP} s[{64 + 2 * i}:{65 + 2 * i}]')
        self.pend.append(self.n); self.names.append(name); self.n += 1

    def flush(self):
        if not STAMP or not self.pend: return
        k = self.k
        k.wait(lg=0)
        if not k.lgq: k.I('s_waitcnt lgkmcnt(0)')
        for i, n in enumerate(self.pend):
            assert n < 64
            k.I(f'v_writelane_b32 {v(VSTAMP)}, s{64 + 2 * i}, {n}')
        self.pend = []


def srd(k, sr, ptr, nbytes):
    k.I(f's_mov_b32 {s(sr)}, {s(ptr)}')
    k.I(f's_mov_b32 {s(sr + 1)}, {s(ptr + 1)}')
    k.I(f's_mov_b32 {s(sr + 2)}, {nbytes}')
    k.I(f's_mov_b32 {s(sr + 3)}, 0x00020000')


def emit_signal(k, p, first=False):
    k.I(f's_add_u32 {s(SPN)}, {s(TOK)}, {p}')
    k.I(f'v_mov_b32 {v(VS + 5)}, {s(SPN)}')
    k.I(f'v_lshlrev_b32 {v(VS + 4)}, {FRS_LOG}, v2')
    k.I('s_mov_b32 exec_hi, 0')
    k.I(f'buffer_store_dword {v(VS + 5)}, {v(VS + 4)}, s[{WS}:{WS + 3}], {s(FST)} offen sc1')
    if first:
        k.I(f'v_mov_b32 {v(VS + 3)}, {s(TOKB)}')
        k.I(f's_add_u32 s3, {s(FST)}, {FLB}')
        k.I(f'buffer_store_dword {v(VS + 3)}, {v(VS + 4)}, s[{WS}:{WS + 3}], s3 offen sc1')
    k.I('s_mov_b32 exec_hi, -1')


SPARE_MASK = 0xA000A000


def poll_first_issue(k):
    k.I(f's_add_u32 s8, {s(FPA)}, {FLB}')
    k.I(f'buffer_load_dwordx4 {v(VS, 4)}, {v(VS + 6)}, s[{WS}:{WS + 3}], {s(FPA)} offen sc1')
    k.I(f'buffer_load_dwordx4 {v(VS - 4, 4)}, {v(VS + 6)}, s[{WS}:{WS + 3}], s8 offen sc1')


def poll_spare_issue(k):
    k.I(f's_mov_b32 exec_lo, {SPARE_MASK:#x}')
    k.I(f's_mov_b32 exec_hi, {SPARE_MASK:#x}')
    h = k.I(f'buffer_load_dwordx4 {v(VS, 4)}, {v(VS + 6)}, s[{WS}:{WS + 3}], {s(FPA)} offen sc1')
    k.I('s_mov_b64 exec, -1')
    return h


def emit_poll(k, p, narrow=False, first=False, spare=False, preissued=False):
    k.I(f's_add_u32 s3, {s(TOK)}, {p}')
    k.I(f's_mov_b32 {s(SPN)}, {SPIN_MAX}')
    if narrow: k.I('s_mov_b64 exec, 15')
    if spare:
        k.I(f's_mov_b32 exec_lo, {SPARE_MASK:#x}')
        k.I(f's_mov_b32 exec_hi, {SPARE_MASK:#x}')
    if first: k.I(f's_add_u32 s8, {s(FPA)}, {FLB}')
    lp, dn = k.newlabel('POLL'), k.newlabel('PDONE')
    if preissued:
        lchk = k.newlabel('PCHK')
        k.I(f's_branch {lchk}')
    k.raw(lp + ':')
    k.I(f'buffer_load_dwordx4 {v(VS, 4)}, {v(VS + 6)}, s[{WS}:{WS + 3}], {s(FPN if narrow else FPA)} offen sc1')
    if first:
        k.I(f'buffer_load_dwordx4 {v(VS - 4, 4)}, {v(VS + 6)}, s[{WS}:{WS + 3}], s8 offen sc1')
    if preissued:
        k.raw(lchk + ':')
        k.I('s_waitcnt vmcnt(0)')
    k.wait(vm=0)
    for i in range(4): k.I(f'v_subrev_u32 {v(VS + i)}, s3, {v(VS + i)}')
    k.I(f'v_max3_u32 {v(VS)}, {v(VS)}, {v(VS + 1)}, {v(VS + 2)}')
    if first:
        for i in range(4): k.I(f'v_xor_b32 {v(VS - 4 + i)}, {s(TOKB)}, {v(VS - 4 + i)}')
        k.I(f'v_or3_b32 {v(VS - 4)}, {v(VS - 4)}, {v(VS - 3)}, {v(VS - 2)}')
        k.I(f'v_or_b32 {v(VS - 4)}, {v(VS - 4)}, {v(VS - 1)}')
        k.I(f'v_cmp_ne_u32 vcc, 0, {v(VS - 4)}')
        k.I(f'v_cndmask_b32 {v(VS - 4)}, 0, -1, vcc')
        k.I(f'v_max_u32 {v(VS)}, {v(VS)}, {v(VS - 4)}')
    k.I(f'v_max_u32 {v(VS)}, {v(VS)}, {v(VS + 3)}')
    k.I(f'v_cmp_lt_u32 vcc, {WIN}, {v(VS)}')
    k.I('s_and_b64 exec, vcc, exec')
    k.I(f's_cbranch_scc0 {dn}')
    k.I(f's_sub_u32 {s(SPN)}, {s(SPN)}, 1')
    k.I(f's_cmp_lg_u32 {s(SPN)}, 0')
    k.I(f's_cbranch_scc1 {lp}')
    if DBGF:
        k.I('s_cmp_eq_u32 s63, 0')
        k.I(f's_cselect_b32 s63, {p}, s63')
    k.raw(dn + ':')
    k.I('s_mov_b64 exec, -1')


def wave0(k, fn):
    vq, lq = list(k.vmq), list(k.lgq)
    k.I('s_cmp_lg_u32 s6, 0')
    stt = k.skip_begin('s_cbranch_scc1')
    fn()
    k.skip_end(stt)
    k.vmq, k.lgq = vq, lq


def handoff(k, st, sig, waitp=None, narrow=False, first=False, name='', sigfirst=False, after_sig=None, pre=False):
    if sig is not None: k.wait_all()
    st(name + ':drained')
    if sig is not None: k.I('s_barrier')
    if after_sig is None:
        def body():
            if sig is not None: emit_signal(k, sig, sigfirst)
            if waitp is not None: emit_poll(k, waitp, narrow, first, preissued=pre)
        wave0(k, body)
    else:
        if sig is not None: wave0(k, lambda: emit_signal(k, sig, sigfirst))
        after_sig()
        if waitp is not None: wave0(k, lambda: emit_poll(k, waitp, narrow, first))
    if waitp is not None: k.I('s_barrier')
    st(name + ':passed')
    st.flush()


class Rec:
    def __init__(self): self.l = []
    def I(self, t): self.l.append(t)
    def M(self, text):
        for ln in text.strip().split('\n'):
            ln = ln.strip()
            if ln: self.l.append(ln)


def interleave(k, *lists):
    n = max(len(x) for x in lists)
    for i in range(n):
        for x in lists:
            if i < len(x): k.I(x[i])


def prologue(k, label, st):
    k.M(f'''
    s_cmp_ge_u32 s2, {NWG}
    s_cbranch_scc0 {label}_go
    s_endpgm
    ''')
    k.raw(f'{label}_go:')
    if STAMP: k.I(f'v_mov_b32 {v(VSTAMP)}, 0')
    st('start')
    k.M(f'''
    s_load_dwordx16 s[36:51], s[0:1], 0
    s_load_dwordx8 s[52:59], s[0:1], 64
    s_load_dwordx2 s[4:5], s[0:1], {KA['ws']}
    v_lshrrev_b32 v1, 6, v0
    v_and_b32 v2, 63, v0
    v_lshlrev_b32 {v(VS + 6)}, 4, v2
    s_and_b32 s7, s2, 7
    s_lshr_b32 s8, s2, 3
    v_readfirstlane_b32 s6, v1
    s_mul_i32 {s(S_CP)}, s7, 28
    s_add_u32 {s(S_CP)}, {s(S_CP)}, s8
    s_mul_i32 s9, s8, 37
    s_lshr_b32 s9, s9, 8
    s_mul_i32 s10, s9, 7
    s_sub_u32 {s(S_DT)}, s8, s10
    s_lshl_b32 s10, s7, 2
    s_add_u32 {s(S_LB)}, s9, s10
    s_and_b32 s9, s7, 3
    s_lshl_b32 s9, s9, 2
    s_lshr_b32 s10, s8, 3
    s_add_u32 {s(S_RB)}, s9, s10
    s_lshr_b32 s9, s7, 2
    s_lshl_b32 s9, s9, 3
    s_and_b32 s10, s8, 7
    s_add_u32 {s(S_FS)}, s9, s10
    s_lshl_b32 s9, {s(S_RB)}, 4
    s_add_u32 s9, s9, {s(S_FS)}
    s_lshl_b32 {s(FST)}, s9, 2
    s_and_b32 s9, s2, 31
    s_lshl_b32 {s(FPA)}, s9, {FRS_LOG}
    s_lshr_b32 s9, {s(S_LB)}, 1
    s_lshl_b32 s9, s9, 6
    s_add_u32 {s(FPN)}, {s(FPA)}, s9
    s_lshl_b32 {s(S_W1K)}, s6, 10
    s_mul_i32 s9, {s(S_FS)}, {7 * 28672}
    s_add_u32 s9, s9, {W1P}
    s_add_u32 {s(S_WV)}, s9, {s(S_W1K)}
    s_and_b32 s10, s6, 1
    s_mul_i32 s10, s10, 28672
    s_add_u32 s9, s9, s10
    s_lshr_b32 s10, s6, 1
    s_lshl_b32 s10, s10, 10
    s_add_u32 {s(S_WP)}, s9, s10
    ''')
    assert FL == 0
    k.wait_all()
    st('kargs')
    srd(k, WS, 4, WS_USED)
    k.I(f's_load_dword {s(S_GEN)}, s[4:5], {GEN}')
    k.I(f's_mov_b32 {s(P_OUT)}, {s(P_OUT0)}')
    k.I(f's_mov_b32 {s(P_OUT + 1)}, {s(P_OUT0 + 1)}')
    if DBGF: k.I('s_mov_b32 s63, 0')
    TOUCH = int(os.environ.get('TOUCH', 0))
    if TOUCH:
        k.I(f'v_lshlrev_b32 v246, {TOUCH}, v0')
        k.I(f'v_min_u32 v246, {WS_USED - (1 << TOUCH)}, v246')
        k.I(f's_mov_b32 s8, {(1 << TOUCH) - 0x1000}')
        k.I(f'buffer_load_dword v247, v246, s[{WS}:{WS + 3}], s8 offen sc1')


def token(k):
    k.I(f's_mul_i32 {s(TOK)}, {s(S_GEN)}, 0x9E3779B1')
    k.I(f's_add_u32 {s(TOK)}, {s(TOK)}, 0x7F4A7C15')
    k.I(f's_mul_i32 {s(TOKB)}, {s(S_GEN)}, 0x85EBCA6B')
    k.I(f's_add_u32 {s(TOKB)}, {s(TOKB)}, 0xC2B2AE35')


LN_RAW, LN_S = 216, 223


def ln1_issue(k, sr):
    srd(k, sr, P_U, L * D * 2)
    k.M(f'''
    v_lshrrev_b32 v225, 5, v0
    v_mul_u32_u24 v225, 896, v225
    v_and_b32 v224, 31, v0
    v_mul_u32_u24 v224, 28, v224
    v_add_u32 v225, v225, v224
    s_mul_i32 s7, s2, {8 * 896}
    buffer_load_dwordx4 {v(LN_RAW, 4)}, v225, s[{sr}:{sr + 3}], s7 offen
    buffer_load_dwordx3 {v(LN_RAW + 4, 3)}, v225, s[{sr}:{sr + 3}], s7 offen offset:16
    ''')


def ln1_finish(k):
    a_, b_ = LN_S, LN_S + 1
    k.M(f'''
    v_mov_b32 {v(a_)}, 0
    v_mov_b32 {v(b_)}, 0
    v_mov_b32 v225, 0x3f803f80
    ''')
    for j in range(7):
        k.I(f'v_dot2c_f32_bf16 {v(a_)}, {v(LN_RAW + j)}, v225')
        k.I(f'v_dot2c_f32_bf16 {v(b_)}, {v(LN_RAW + j)}, {v(LN_RAW + j)}')
    for pat in ('quad_perm:[1,0,3,2]', 'quad_perm:[2,3,0,1]', 'row_half_mirror', 'row_mirror'):
        for r in (a_, b_):
            k.I(f'v_add_f32_dpp {v(r)}, {v(r)}, {v(r)} {pat} row_mask:0xf bank_mask:0xf')
    for r in (a_, b_):
        k.I(f'v_add_f32_dpp {v(r)}, {v(r)}, {v(r)} row_bcast:15 row_mask:0xa bank_mask:0xf')
    k.M(f'''
    v_lshrrev_b32 v225, 5, v0
    v_lshlrev_b32 v225, 2, v225
    s_lshl_b32 s7, s2, 7
    s_add_u32 s8, s7, {ST1}
    s_mov_b32 exec_lo, 0x80000000
    s_mov_b32 exec_hi, 0x80000000
    buffer_store_dword {v(a_)}, v225, s[{WS}:{WS + 3}], s8 offen sc1
    buffer_store_dword {v(b_)}, v225, s[{WS}:{WS + 3}], s8 offen offset:32 sc1
    s_mov_b64 exec, -1
    ''')
    k.M(f'''
    v_mov_b32 {v(LN_RAW)}, 0
    v_lshlrev_b32 {v(LN_RAW + 1)}, 2, v2
    s_add_u32 s8, s7, {ST3}
    s_cmp_lg_u32 s6, 0
    ''')
    stt = k.skip_begin('s_cbranch_scc1')
    k.I('s_mov_b64 exec, 0xffff')
    k.I(f'buffer_atomic_swap {v(LN_RAW)}, {v(LN_RAW + 1)}, s[{WS}:{WS + 3}], s8 offen sc1')
    k.I('s_mov_b64 exec, -1')
    k.skip_end(stt)


W2_RAW, W2_O = 226, 234


def w2_issue(k, sr):
    srd(k, sr, P_WD, F * D * 2)
    k.M(f'''
    v_lshlrev_b32 v242, 2, v0
    s_lshr_b32 s7, s2, 1
    s_lshl_b32 s7, s7, 4
    s_and_b32 s8, s2, 1
    s_lshl_b32 s8, s8, 2
    s_add_u32 s7, s7, s8
    s_mul_i32 s7, s7, 896
    ''')
    for sl in range(8):
        frow = 8 * (sl >> 2) + (sl & 3)
        k.I(f's_add_u32 s8, s7, {frow * 896}')
        k.I(f'buffer_load_dword {v(W2_RAW + sl)}, v242, s[{sr}:{sr + 3}], s8 offen')


def w2_finish(k):
    k.M(f'''
    v_mov_b32 v243, 0x05040100
    v_mov_b32 v244, 0x07060302
    v_lshrrev_b32 v242, 4, v0
    v_mul_u32_u24 v242, 114688, v242
    v_and_b32 v245, 15, v0
    v_lshl_add_u32 v242, v245, 5, v242
    s_lshl_b32 s7, s2, 9
    s_add_u32 s7, s7, {W2P}
    ''')
    for j in range(4):
        a_, b_ = W2_RAW + 2 * j, W2_RAW + 2 * j + 1
        k.I(f'v_perm_b32 {v(W2_O + j)}, {v(b_)}, {v(a_)}, v243')
        k.I(f'v_perm_b32 {v(W2_O + 4 + j)}, {v(b_)}, {v(a_)}, v244')
    k.I('v_cmp_gt_u32 vcc, 224, v0')
    k.I('s_and_saveexec_b64 s[8:9], vcc')
    k.I(f'buffer_store_dwordx4 {v(W2_O, 4)}, v242, s[{WS}:{WS + 3}], s7 offen sc1')
    k.I(f'buffer_store_dwordx4 {v(W2_O + 4, 4)}, v242, s[{WS}:{WS + 3}], s7 offen offset:16 sc1')
    k.I('s_mov_b64 exec, -1')


PKL = T0 + 2 * 36864 + 2 * 12288
PK_D = 216
PK_A = (224, 225, 246, 247)


def pk_issue(k):
    srd(k, 24, P_WG, D * F * 2)
    srd(k, 28, P_WU, D * F * 2)
    k.M(f'''
    s_lshl_b32 s7, {s(S_CP)}, 2
    s_add_u32 s7, s7, s6
    s_sub_u32 s8, s7, 784
    s_cmp_ge_u32 s7, 784
    s_cselect_b32 s7, s8, s7
    s_mul_i32 s8, s7, 2341
    s_lshr_b32 s8, s8, 16
    s_mul_i32 s9, s8, 28
    s_sub_u32 s9, s7, s9
    s_mul_i32 s10, s9, {16 * 3584}
    s_lshl_b32 s11, s8, 7
    s_add_u32 s10, s10, s11
    s_add_u32 s11, s10, {8 * 3584}
    s_mul_i32 s16, s8, {4 * 28672}
    s_lshl_b32 s9, s9, 10
    s_add_u32 s16, s16, s9
    s_add_u32 s16, s16, {W1P}
    v_lshrrev_b32 v246, 3, v2
    v_and_b32 v247, 3, v246
    v_lshlrev_b32 v247, 1, v247
    v_and_b32 v224, 7, v2
    v_xor_b32 v247, v247, v224
    v_mul_u32_u24 v246, 3584, v246
    v_xor_b32 v224, 2, v247
    v_lshl_add_u32 v247, v247, 4, v246
    v_lshl_add_u32 v246, v224, 4, v246
    s_lshl_b32 s9, s6, 12
    s_add_u32 m0, s9, {PKL}
    buffer_load_dwordx4 v247, s[24:27], s10 offen lds
    s_add_u32 m0, s9, {PKL + 1024}
    buffer_load_dwordx4 v247, s[24:27], s11 offen lds
    s_add_u32 m0, s9, {PKL + 2048}
    buffer_load_dwordx4 v246, s[28:31], s10 offen lds
    s_add_u32 m0, s9, {PKL + 3072}
    ''')
    return k.I('buffer_load_dwordx4 v246, s[28:31], s11 offen lds')


XKL = PKL + 4 * 4096
XK_D = 208


def xk_issue(k):
    srd(k, 32, P_U, L * D * 2)
    k.M(f'''
    s_lshl_b32 s7, {s(S_CP)}, 2
    s_add_u32 s7, s7, s6
    s_mul_i32 s8, s7, 4682
    s_lshr_b32 s8, s8, 16
    s_mul_i32 s9, s8, 14
    s_sub_u32 s9, s7, s9
    s_mul_i32 s10, s8, {32 * 896}
    s_lshl_b32 s11, s9, 6
    s_add_u32 s10, s10, s11
    s_add_u32 s11, s10, {16 * 896}
    s_lshl_b32 s17, s9, 17
    s_lshl_b32 s8, s8, 6
    s_add_u32 s17, s17, s8
    s_add_u32 s17, s17, {XT0}
    v_lshrrev_b32 v207, 2, v2
    v_mul_u32_u24 v207, 896, v207
    v_and_b32 v205, 3, v2
    v_lshl_add_u32 v207, v205, 4, v207
    s_lshl_b32 s9, s6, 11
    s_add_u32 m0, s9, {XKL}
    buffer_load_dwordx4 v207, s[32:35], s10 offen lds
    s_add_u32 m0, s9, {XKL + 1024}
    ''')
    return k.I('buffer_load_dwordx4 v207, s[32:35], s11 offen lds')


def xk_finish(k, last_dma):
    k.M(f'''
    v_lshrrev_b32 v207, 4, v2
    v_lshlrev_b32 v205, 3, v207
    v_bfe_u32 v204, v2, 2, 2
    v_add_u32 v205, v205, v204
    v_lshlrev_b32 v205, 6, v205
    v_and_b32 v204, 3, v2
    v_lshl_add_u32 v205, v204, 3, v205
    s_lshl_b32 s9, s6, 11
    s_add_u32 s9, s9, {XKL}
    v_add_u32 v205, s9, v205
    v_and_b32 v204, 15, v2
    v_lshlrev_b32 v204, 12, v204
    v_lshl_add_u32 v207, v207, 4, v204
    s_add_u32 s9, s17, {16 * 4096}
    ''')
    k.wait_op(last_dma)
    for cg in range(2):
        k.I(f'ds_read_b64_tr_b16 {v(XK_D + 4 * cg, 2)}, v205 offset:{cg * 32}')
        k.I(f'ds_read_b64_tr_b16 {v(XK_D + 4 * cg + 2, 2)}, v205 offset:{cg * 32 + 256}')
    k.I(f'buffer_store_dwordx4 {v(XK_D, 4)}, v207, s[{WS}:{WS + 3}], s17 offen sc1')
    return k.I(f'buffer_store_dwordx4 {v(XK_D + 4, 4)}, v207, s[{WS}:{WS + 3}], s9 offen sc1')


def pk_finish(k, last_dma):
    k.M(f'''
    v_bfe_u32 v246, v2, 2, 2
    v_bfe_u32 v247, v2, 4, 1
    v_xor_b32 v225, v246, v247
    v_lshlrev_b32 v225, 1, v225
    v_bfe_u32 v224, v2, 1, 1
    v_xor_b32 v225, v225, v224
    v_lshlrev_b32 v225, 4, v225
    v_lshl_add_u32 v225, v247, 11, v225
    v_lshl_add_u32 v225, v246, 7, v225
    v_lshrrev_b32 v246, 5, v2
    v_lshl_add_u32 v225, v246, 10, v225
    v_and_b32 v246, 1, v2
    v_lshl_add_u32 v225, v246, 3, v225
    s_lshl_b32 s9, s6, 12
    s_add_u32 s9, s9, {PKL}
    v_add_u32 v224, s9, v225
    v_xor_b32 v225, 32, v224
    v_xor_b32 v246, 64, v224
    v_xor_b32 v247, 96, v224
    ''')
    k.I('v_lshlrev_b32 v204, 4, v2')
    k.wait_op(last_dma)
    DR = (216, 220, 234, 238)
    for j in range(4):
        k.I(f'ds_read_b64_tr_b16 {v(DR[j], 2)}, {v(PK_A[j])}')
        k.I(f'ds_read_b64_tr_b16 {v(DR[j] + 2, 2)}, {v(PK_A[j])} offset:512')
    for j in range(4):
        k.I(f's_add_u32 s9, s16, {j * 28672}')
        h = k.I(f'buffer_store_dwordx4 {v(DR[j], 4)}, v204, s[{WS}:{WS + 3}], s9 offen sc1')
    return h


KG_ROWS = T0
KG_PART = T0 + 2 * 36864
KG_TAB = T0
X0RAW = 208


def kgen_a(c):
    k = Rec()
    R = 100 * c
    RO = c * 36864
    r = lambda i, n=1: v(i + R, n)
    if c == 0: k.I(f'v_lshlrev_b32 {r(10)}, 16, v206')
    else: k.I(f'v_and_b32 {r(10)}, 0xffff0000, v206')
    k.M(f'''
    v_mul_f32 {r(10)}, {f32hex(LOG2E)}, {r(10)}
    v_exp_f32 {r(10)}, {r(10)}
    v_lshlrev_b32 {r(11)}, 16, {r(11)}
    v_mul_f32 {r(11)}, {f32hex(LOG2E)}, {r(11)}
    v_exp_f32 {r(11)}, {r(11)}
    v_cvt_pk_bf16_f32 {r(8)}, {r(10)}, {r(11)}
    v_lshlrev_b32 {r(10)}, 16, {r(8)}
    v_and_b32 {r(11)}, 0xffff0000, {r(8)}
    v_lshlrev_b32 {r(12)}, 16, {r(12)}
    v_lshlrev_b32 {r(13)}, 16, {r(13)}
    v_lshlrev_b32 {r(14)}, 16, {r(14)}
    v_mul_f32 {r(11)}, {r(11)}, {r(10)}
    v_mul_f32 {r(12)}, {r(12)}, {r(10)}
    v_mul_f32 {r(11)}, {f32hex(-LOG2E)}, {r(11)}
    v_mul_f32 {r(12)}, {f32hex(INV2PI)}, {r(12)}
    v_mul_f32 {r(13)}, {r(13)}, {r(10)}
    v_mul_f32 {r(14)}, {r(14)}, {r(10)}
    ''')
    W = {e: 16 + 2 * e + R for e in range(1, 9)}
    W128 = 36 + R
    C2 = 38 + R
    k.M(f'''
    v_add_f32 v{C2}, {r(13)}, {r(13)}
    v_add_f32 v{C2 + 1}, {r(14)}, {r(14)}
    v_exp_f32 {r(8)}, {r(11)}
    v_fract_f32 {r(9)}, {r(12)}
    v_cos_f32 v{W[1]}, {r(9)}
    v_sin_f32 v{W[1] + 1}, {r(9)}
    v_mul_f32 {r(15)}, 0x43000000, {r(11)}
    v_mul_f32 {r(16)}, 0x43000000, {r(12)}
    v_exp_f32 {r(15)}, {r(15)}
    v_fract_f32 {r(16)}, {r(16)}
    v_mul_f32 v{W[1]}, v{W[1]}, {r(8)}
    v_mul_f32 v{W[1] + 1}, v{W[1] + 1}, {r(8)}
    v_cos_f32 v{W128}, {r(16)}
    v_sin_f32 v{W128 + 1}, {r(16)}
    v_mul_f32 v{W128}, v{W128}, {r(15)}
    v_mul_f32 v{W128 + 1}, v{W128 + 1}, {r(15)}
    ''')
    cmul(k, W[2], W[1], W[1])
    cmul(k, W[4], W[2], W[2])
    cmul(k, W[3], W[2], W[1])
    cmul(k, W[8], W[4], W[4])
    cmul(k, W[5], W[4], W[1])
    cmul(k, W[6], W[3], W[3])
    cmul(k, W[7], W[4], W[3])
    tmpi = [0]

    def put_row(row, pair, neg):
        t = 8 + R + (tmpi[0] & 1)
        tmpi[0] += 1
        k.I(f'v_cvt_pk_bf16_f32 {v(t)}, {v(pair)}, {"-" if neg else ""}{v(pair + 1)}')
        k.I(f'ds_write_b32 v5, {v(t)} offset:{RO + row * 288}')

    LO = {1: W[8]}
    for b in range(2, 9): LO[b] = 40 + R + 2 * (b - 2)
    T = [54 + R, 56 + R]
    k.I(f'v_mov_b32 {r(8)}, 0x3f80')
    k.I(f'ds_write_b32 v5, {r(8)} offset:{RO}')
    tmpi[0] = 1
    put_row(1, LO[1], True)
    for b in range(2, 9):
        if b % 2 == 0: cmul(k, LO[b], LO[b // 2], LO[b // 2])
        else:
            hb = 1 << (b.bit_length() - 1)
            cmul(k, LO[b], LO[hb], LO[b - hb])
        put_row(b, LO[b], True)
    for b in range(9, 16):
        t = T[b & 1]
        if b % 2 == 0: cmul(k, t, LO[b // 2], LO[b // 2])
        else: cmul(k, t, LO[8], LO[b - 8])
        put_row(b, t, True)
    BF = 60 + R
    for ks in range(4):
        k.I(f'ds_read_b128 {v(BF + 4 * ks, 4)}, v6 offset:{RO + ks * 64}')
    AF = 76 + R
    DT = 92 + R
    H = [40 + R, 42 + R]

    def tile_mfma(t):
        for ks in range(4):
            k.I(f'ds_read_b128 {v(AF + 4 * ks, 4)}, v6 offset:{RO + 16 * 288 + ks * 64}')
        for ks in range(4):
            c_ = '0' if ks == 0 else v(DT + 4 * t, 4)
            k.I(f'v_mfma_f32_16x16x32_bf16 {v(DT + 4 * t, 4)}, {v(AF + 4 * ks, 4)}, {v(BF + 4 * ks, 4)}, {c_}')

    def row_mul(row, h, e):
        if e == 0:
            put_row(16 + row, h, False)
        else:
            t = T[row & 1]
            cmul(k, t, h, W[e])
            put_row(16 + row, t, False)

    for e in range(8): row_mul(e, C2, e)
    cur = [H[0]]
    cmul(k, cur[0], C2, W128)
    for e in range(8): row_mul(8 + e, cur[0], e)
    tile_mfma(0)
    hi = [0]

    def step():
        hi[0] ^= 1
        cmul(k, H[hi[0]], cur[0], W128)
        cur[0] = H[hi[0]]

    step()
    for e in range(4): row_mul(e, cur[0], 2 * e)
    step()
    for e in range(4): row_mul(4 + e, cur[0], 2 * e)
    for a_ in range(4):
        step()
        for e in range(2): row_mul(8 + 2 * a_ + e, cur[0], 4 * e)
    tile_mfma(1)
    for a_ in range(9):
        step()
        row_mul(a_, cur[0], 0)
    tile_mfma(2)
    for t in range(3):
        k.I(f'ds_write_b128 v7, {v(DT + 4 * t, 4)} offset:{c * 12288 + t * 1024}')
    return k.l


def phase0_conv(k, st):
    PB = D * NM * 2
    k.M(f'''
    v_lshlrev_b32 v3, 1, v0
    v_mov_b32 v4, 0
    s_lshl_b32 s7, {s(S_CP)}, 10
    s_add_u32 s8, s7, 512
    s_lshl_b32 s9, {s(S_CP)}, 2
    ''')
    srd(k, 24, P_LDT, D * 2)
    k.I('buffer_load_dword v206, v4, s[24:27], s9 offen')
    for i, (ptr, reg) in enumerate(((P_LAR, 11), (P_AIM, 12), (P_CR, 13), (P_CI, 14))):
        sr = 28 if i & 1 == 0 else 32
        srd(k, sr, ptr, PB)
        k.I(f'buffer_load_ushort {v(reg)}, v3, s[{sr}:{sr + 3}], s7 offen')
        k.I(f'buffer_load_ushort {v(reg + 100)}, v3, s[{sr}:{sr + 3}], s8 offen')
    k.I(f's_load_dword {s(S_DSK)}, s[{P_DSK}:{P_DSK + 1}], s9')
    st('i:par')
    ln1_issue(k, 24)
    st('i:ln1')
    xk_last = xk_issue(k)
    st('i:xk')
    pk_last = pk_issue(k)
    st('i:pk')
    w2_issue(k, 28)
    k.M(f'''
    s_mul_i32 s19, s6, 9216
    s_add_u32 s19, s19, {KG_ROWS}
    v_lshlrev_b32 v5, 2, v2
    v_add_u32 v5, s19, v5
    v_and_b32 v6, 15, v2
    v_mul_u32_u24 v6, 288, v6
    v_lshrrev_b32 v7, 4, v2
    v_lshl_add_u32 v6, v7, 4, v6
    v_add_u32 v6, s19, v6
    s_mul_i32 s19, s6, 3072
    s_add_u32 s19, s19, {KG_PART}
    v_lshlrev_b32 v7, 4, v2
    v_add_u32 v7, s19, v7
    ''')
    st('p0:issued')
    ln1_finish(k)
    st('p0:ln1')
    kg = []
    ka, kb = kgen_a(0), kgen_a(1)
    for i in range(max(len(ka), len(kb))):
        if i < len(ka): kg.append(ka[i])
        if i < len(kb): kg.append(kb[i])
    n = len(kg)
    C1, C2, C3 = [int(x) for x in os.environ.get('P0CUT', '120,300,430').split(',')]
    for t in kg[:C1]: k.I(t)
    st('p0:k1')
    xk_finish(k, xk_last)
    pk_finish(k, pk_last)
    st('p0:pk')
    w2_finish(k)
    last_store = k.vmq[-1]
    st('p0:w2')
    for t in kg[C1:C2]: k.I(t)
    for t in kg[C2:C3]: k.I(t)
    token(k)
    k.wait_op(last_store)
    k.I('s_barrier')
    wave0(k, lambda: emit_signal(k, 1, True))
    st('p0:sig1')
    for t in kg[C3:]: k.I(t)
    print('kgen instructions', n)
    st('p0:tiles')
    k.wait_all(vm=False)
    k.I('s_barrier')
    wave0(k, lambda: poll_first_issue(k))
    k.I('v_lshlrev_b32 v7, 2, v0')
    k.I(f'v_add_u32 v7, {KG_PART}, v7')
    for c in range(2):
        for t in range(3):
            for w in range(4):
                k.I(f'ds_read_b32 {v(40 + 100 * c + 4 * t + w)}, v7 offset:{c * 12288 + w * 3072 + t * 1024}')
    k.M('''
    v_and_b32 v8, 3, v0
    v_bfe_u32 v9, v0, 2, 4
    s_lshr_b32 s19, s6, 1
    s_lshl_b32 s19, s19, 7
    s_and_b32 s18, s6, 1
    s_lshl_b32 s18, s18, 2
    s_add_u32 s19, s19, s18
    v_lshl_add_u32 v10, v9, 3, v8
    v_add_u32 v10, s19, v10
    v_lshl_add_u32 v11, v9, 2, v8
    s_lshl_b32 s19, s6, 6
    s_add_u32 s19, s19, 256
    v_add_u32 v11, s19, v11
    v_and_b32 v12, 1, v8
    v_lshrrev_b32 v13, 1, v8
    v_lshl_add_u32 v12, v13, 5, v12
    v_lshl_add_u32 v12, v9, 1, v12
    v_add_u32 v12, s19, v12
    s_cmp_lt_u32 s6, 2
    s_cselect_b64 vcc, -1, 0
    v_cndmask_b32 v11, v12, v11, vcc
    v_lshl_add_u32 v12, v8, 4, v9
    s_lshl_b32 s19, s6, 6
    s_add_u32 s19, s19, 512
    v_add_u32 v12, s19, v12
    v_lshlrev_b32 v10, 2, v10
    v_lshlrev_b32 v11, 2, v11
    v_lshlrev_b32 v12, 2, v12
    ''')
    for c in range(2):
        for t in range(3):
            b = 40 + 100 * c + 4 * t
            k.I(f'v_add_f32 {v(b)}, {v(b)}, {v(b + 1)}')
            k.I(f'v_add_f32 {v(b + 2)}, {v(b + 2)}, {v(b + 3)}')
            k.I(f'v_add_f32 {v(b)}, {v(b)}, {v(b + 2)}')
    for c in range(2):
        for t in range(3):
            k.I(f'ds_write_b32 {v(10 + t)}, {v(40 + 100 * c + 4 * t)} offset:{KG_TAB + c * 4096}')
    k.M(f'''
    v_mov_b32 v13, 0
    v_mov_b32 v14, 3072
    ds_write_b32 v14, v13 offset:{KG_TAB}
    ds_write_b32 v14, v13 offset:{KG_TAB + 4096}
    v_lshlrev_b32 v15, 3, v0
    v_sub_u32 v15, 2047, v15
    v_cvt_f32_u32 v16, v15
    v_mov_b32 v17, 0x43000000
    v_cmp_le_u32 vcc, 240, v0
    v_cndmask_b32 v18, 0, v17, vcc
    v_add_f32 v16, v16, v18
    v_mov_b32 v19, 0xfffef600
    v_mov_b32 v20, 0xfffef400
    v_cndmask_b32 v19, v19, v20, vcc
    ''')
    for e in range(8):
        if e == 0: k.I('v_mov_b32 v22, v16')
        else: k.I(f'v_add_f32 {v(22 + e)}, {f32hex(-float(e))}, v16')
    k.M('''
    v_cvt_f32_u32 v30, v15
    v_add_f32 v30, 0xc1000000, v30
    v_cmp_le_u32 vcc, 239, v0
    v_cndmask_b32 v18, 0, v17, vcc
    v_add_f32 v30, v30, v18
    v_mov_b32 v21, 0xfffef600
    v_cndmask_b32 v21, v21, v20, vcc
    ''')
    for j in range(4):
        k.I(f'v_cvt_pk_bf16_f32 {v(32 + j)}, {v(22 + 2 * j)}, {v(23 + 2 * j)}')
    k.I('v_cvt_pk_bf16_f32 v36, v30, v30')
    for e in range(8):
        sel = '[1,0,0,0]' if e & 1 else '[0,0,0,0]'
        k.I(f'v_mad_u32_u16 {v(22 + e)}, {v(32 + e // 2)}, 4, v19 op_sel:{sel}')
    k.I('v_mad_u32_u16 v30, v36, 4, v21 op_sel:[0,0,0,0]')
    k.M('''
    v_cmp_eq_u32 vcc, 255, v0
    v_cndmask_b32 v30, v30, v14, vcc
    ''')
    k.barrier()
    st('p0:table')
    for c in range(2):
        for e in range(9):
            k.I(f'ds_read_b32 {v(40 + 100 * c + e)}, {v(22 + e)} offset:{KG_TAB + c * 4096}')
    k.I('v_lshlrev_b32 v7, 4, v0')
    for c in range(2):
        R = 100 * c
        for j in range(4):
            k.I(f'v_cvt_pk_bf16_f32 {v(52 + R + j)}, {v(40 + R + 2 * j)}, {v(41 + R + 2 * j)}')
        for j in range(4):
            k.I(f'v_cvt_pk_bf16_f32 {v(56 + R + j)}, {v(41 + R + 2 * j)}, {v(42 + R + 2 * j)}')
        k.I(f'ds_write_b128 v7, {v(52 + R, 4)} offset:{KSL + c * KS_STRIDE}')
        k.I(f'ds_write_b128 v7, {v(56 + R, 4)} offset:{KSL + c * KS_STRIDE + KS_O}')
    k.M('''
    v_mov_b32 v60, 0
    v_mov_b32 v61, 0
    v_mov_b32 v62, 0
    v_mov_b32 v63, 0
    v_add_u32 v8, 4096, v7
    v_add_u32 v9, 8192, v7
    v_cmp_le_u32 vcc, 4, v0
    v_cndmask_b32 v8, v8, v9, vcc
    s_cmp_lg_u32 s6, 0
    ''')
    stt = k.skip_begin('s_cbranch_scc1')
    k.I('s_mov_b64 exec, 0xff')
    k.I(f'ds_write_b128 v8, v[60:63] offset:{KSL}')
    k.I(f'ds_write_b128 v8, v[60:63] offset:{KSL + KS_STRIDE}')
    k.I('s_mov_b64 exec, -1')
    k.skip_end(stt)
    st('p0:kdone')


def wblocks():
    bl = [('P', i) for i in range(14)]
    for t in range(2, 7):
        for q in range(7): bl.append(('V', t, q))
    return bl


def w_dma(b, tmp='s18'):
    blk = wblocks()[b]
    slot = b % NWR_
    out = [f's_add_u32 m0, {s(S_W1K)}, {WRING + slot * 4096}']
    if blk[0] == 'P':
        out.append(f's_add_u32 {tmp}, {s(S_WP)}, {blk[1] * 2048}')
    else:
        out.append(f's_add_u32 {tmp}, {s(S_WV)}, {blk[1] * 28672 + blk[2] * 4096}')
    out.append(f'buffer_load_dwordx4 v4, s[{WS}:{WS + 3}], {tmp} offen lds')
    return out


UL = T0
UST = 4608
PL = UL + 2 * UST
PW, PT = 9216, 1152
CX, CS1, CS2 = 8, 16, 24
CAB, CBB = 36, 40


def round_pair(k, d0, d1, s0, s1, tmp):
    k.I(f'v_cvt_pk_bf16_f32 {v(tmp)}, {v(s0)}, {v(s1)}')
    k.I(f'v_lshlrev_b32 {v(d0)}, 16, {v(tmp)}')
    k.I(f'v_and_b32 {v(d1)}, 0xffff0000, {v(tmp)}')


def ln_stats(k, S1, S2, n, tmp):
    c = f32hex(1.0 / D)
    for i in range(n):
        k.I(f'v_mul_f32 {v(S1 + i)}, {c}, {v(S1 + i)}')
        k.I(f'v_mul_f32 {v(S2 + i)}, {c}, {v(S2 + i)}')
    for i in range(n):
        k.I(f'v_fma_f32 {v(S2 + i)}, -{v(S1 + i)}, {v(S1 + i)}, {v(S2 + i)}')
        k.I(f'v_max_f32 {v(S2 + i)}, 0, {v(S2 + i)}')
    for i in range(0, n, 2):
        round_pair(k, S1 + i, S1 + i + 1, S1 + i, S1 + i + 1, tmp)
        round_pair(k, S2 + i, S2 + i + 1, S2 + i, S2 + i + 1, tmp + 1)
    for i in range(n):
        k.I(f'v_add_f32 {v(S2 + i)}, {f32hex(1e-5)}, {v(S2 + i)}')
    for i in range(0, n, 2):
        round_pair(k, S2 + i, S2 + i + 1, S2 + i, S2 + i + 1, tmp + ((i >> 1) & 1))
    for i in range(n):
        k.I(f'v_sqrt_f32 {v(S2 + i)}, {v(S2 + i)}')
    for i in range(0, n, 2):
        round_pair(k, S2 + i, S2 + i + 1, S2 + i, S2 + i + 1, tmp + ((i >> 1) & 1))
    for i in range(n):
        k.I(f'v_rcp_f32 {v(S2 + i)}, {v(S2 + i)}')
    for i in range(n):
        k.I(f'v_mul_f32 {v(S1 + i)}, -{v(S1 + i)}, {v(S2 + i)}')


def conv_prep(k, stage):
    k.M(f'''
    v_lshlrev_b32 v3, 4, v0
    v_lshlrev_b32 v4, 4, v2
    v_lshlrev_b32 v5, 7, v0
    v_and_b32 v6, 15, v2
    v_lshrrev_b32 v7, 4, v2
    s_and_b32 s17, s6, 1
    s_lshr_b32 s18, s6, 1
    v_lshlrev_b32 v32, 1, v6
    v_sub_u32 v33, {2 * 2031 - 4032}, v32
    v_sub_u32 v34, {KS_O + 2 * 2030 - 4032}, v32
    v_and_b32 v35, 1, v6
    v_cmp_eq_u32 vcc, 1, v35
    v_cndmask_b32 v33, v34, v33, vcc
    v_lshl_add_u32 v33, v7, 4, v33
    s_mul_i32 s19, s17, {KS_STRIDE}
    s_lshl_b32 s24, s18, 8
    s_sub_u32 s19, s19, s24
    s_add_u32 s19, s19, {KSL + 256}
    v_add_u32 {v(CAB)}, s19, v33
    v_add_u32 {v(CAB + 1)}, 1024, {v(CAB)}
    v_add_u32 {v(CAB + 2)}, 2048, {v(CAB)}
    v_add_u32 {v(CAB + 3)}, 3072, {v(CAB)}
    v_lshlrev_b32 v32, 5, v6
    v_lshl_add_u32 v32, v7, 4, v32
    s_mul_i32 s19, s17, {UST}
    s_sub_u32 s19, s19, s24
    s_add_u32 s19, s19, {UL + 288}
    v_add_u32 {v(CBB)}, s19, v32
    ''')


def conv_phase(k, st, stage):
    xin = XT0 if stage == 0 else XT2
    xout = XT1 if stage == 0 else XT3
    sto = ST1 if stage == 0 else ST3
    W_ = f's[{WS}:{WS + 3}]'
    k.M(f'''
    s_lshl_b32 s11, {s(S_CP)}, 13
    s_mov_b32 s13, {sto}
    buffer_load_dwordx4 {v(CS1, 4)}, v5, {W_}, s13 offen
    buffer_load_dwordx4 {v(CS2, 4)}, v5, {W_}, s13 offen offset:32
    buffer_load_dwordx4 {v(CS1 + 4, 4)}, v5, {W_}, s13 offen offset:16
    buffer_load_dwordx4 {v(CS2 + 4, 4)}, v5, {W_}, s13 offen offset:48
    ''')
    if True:
        k.M(f'''
        s_add_u32 s14, s11, {xin}
        s_add_u32 s15, s11, {xin + 4096}
        buffer_load_dwordx4 {v(CX, 4)}, v3, {W_}, s14 offen
        buffer_load_dwordx4 {v(CX + 4, 4)}, v3, {W_}, s15 offen
        ''')
    k.M(f'''
    v_mov_b32 v32, 0
    v_mov_b32 v33, 0
    v_mov_b32 v34, 0
    v_mov_b32 v35, 0
    v_and_b32 v6, 31, v0
    v_lshlrev_b32 v6, 4, v6
    ds_write_b128 v6, v[32:35] offset:{UL}
    ds_write_b128 v6, v[32:35] offset:{UL + UST}
    s_add_u32 s11, s11, {xout}
    s_add_u32 s12, s11, 4096
    s_lshl_b32 s37, {s(S_DSK)}, 16
    s_and_b32 s38, {s(S_DSK)}, 0xffff0000
    ''')
    st('cv:issued')
    ln_stats(k, CS1, CS2, 8, 32)
    st('cv:stats')
    U = 44
    T = 52
    S1, S2, X = CS1, CS2, CX
    for ch in range(2):
        for j in range(4):
            x = X + 4 * ch + j
            t0, t1 = T + 2 * (j & 1) + 4 * (ch & 1), T + 2 * (j & 1) + 1 + 4 * (ch & 1)
            k.I(f'v_lshlrev_b32 {v(t0)}, 16, {v(x)}')
            k.I(f'v_and_b32 {v(t1)}, 0xffff0000, {v(x)}')
            k.I(f'v_fma_f32 {v(t0)}, {v(t0)}, {v(S2 + 2 * j)}, {v(S1 + 2 * j)}')
            k.I(f'v_fma_f32 {v(t1)}, {v(t1)}, {v(S2 + 2 * j + 1)}, {v(S1 + 2 * j + 1)}')
            k.I(f'v_cvt_pk_bf16_f32 {v(U + 4 * ch + j)}, {v(t0)}, {v(t1)}')
        k.I(f'ds_write_b128 v3, {v(U + 4 * ch, 4)} offset:{UL + ch * UST + 512}')
    k.barrier()
    st('cv:u')
    ACC = 64
    AF = [96, 128]
    BF = [160, 192]

    def frag_loads(rr, buf):
        out = []
        def aload(c):
            j = (7 - c) >> 1
            o = 128 * ((7 - c) & 1) + 16 * (3 - rr)
            out.append(f'ds_read2_b32 {v(AF[buf] + 4 * c, 2)}, {v(CAB + j)} offset0:{o} offset1:{o + 1}')
            out.append(f'ds_read2_b32 {v(AF[buf] + 4 * c + 2, 2)}, {v(CAB + j)} offset0:{o + 2} offset1:{o + 3}')
        def bload(tau):
            out.append(f'ds_read_b128 {v(BF[buf] + 4 * tau, 4)}, {v(CBB)} offset:{512 * tau + 64 * (3 - rr)}')
        aload(0)
        for tau in range(8): bload(tau)
        for c in range(1, 8): aload(c)
        return out

    late_w = False
    if late_w: poll_spare_issue(k)
    for t in frag_loads(0, 0): k.I(t)
    wq = list(range(NWR_))
    WRR = int(os.environ.get('WRR', 2))
    for rr in range(4):
        buf = rr & 1
        nxt = frag_loads(rr + 1, buf ^ 1) if rr < 3 else []
        cnt = 0
        if late_w and rr == WRR:
            st('cv:wchk')
            emit_poll(k, 2, spare=True, preissued=True)
            st('cv:wok')
        for c in range(8):
            for tau in range(8 - c):
                t = tau + c
                src = '0' if (rr == 0 and c == 0) else v(ACC + 4 * t, 4)
                k.I(f'v_mfma_f32_16x16x32_bf16 {v(ACC + 4 * t, 4)}, {v(AF[buf] + 4 * c, 4)}, {v(BF[buf] + 4 * tau, 4)}, {src}')
                if nxt and cnt < 24:
                    k.I(nxt.pop(0))
                elif wq and late_w and rr >= WRR:
                    if rr < 3 or cnt < 24:
                        for x_ in w_dma(wq.pop(0)): k.I(x_)
                elif wq and not late_w and (cnt & 1) == 0 and (rr < 3 or cnt < 24):
                    for x_ in w_dma(wq.pop(0)): k.I(x_)
                cnt += 1
        assert not nxt
    assert not wq
    st('cv:mfma')
    k.M(f'''
    v_lshrrev_b32 v6, 5, v2
    v_lshlrev_b32 v6, 7, v6
    v_add_u32 v6, v6, v4
    s_mul_i32 s19, s6, {PW}
    v_add_u32 v6, s19, v6
    ''')
    for t in range(8):
        k.I(f'ds_write_b128 v6, {v(ACC + 4 * t, 4)} offset:{PL + t * PT}')
    k.M(f'''
    v_lshrrev_b32 v7, 5, v0
    v_mul_u32_u24 v7, {PT}, v7
    v_bfe_u32 v32, v0, 1, 4
    v_lshl_add_u32 v7, v32, 4, v7
    v_and_b32 v32, 1, v0
    v_mul_u32_u24 v32, 640, v32
    v_add_u32 v7, v7, v32
    ''')
    k.barrier()
    Y = 96
    for ch in range(2):
        for hf in range(2):
            for e in range(2):
                k.I(f'ds_read_b128 {v(Y + 16 * ch + 8 * hf + 4 * e, 4)}, v7 offset:{PL + (ch + 2 * hf) * PW + 256 * e}')
    O = 128
    for ch in range(2):
        dsk = s(37 + ch)
        for j in range(4):
            y0, y1 = Y + 16 * ch + 2 * j, Y + 16 * ch + 2 * j + 1
            t0, t1, t2, t3 = T, T + 1, T + 2, T + 3
            if j & 1: t0, t1, t2, t3 = T + 4, T + 5, T + 6, T + 7
            k.I(f'v_add_f32 {v(y0)}, {v(y0)}, {v(y0 + 8)}')
            k.I(f'v_add_f32 {v(y1)}, {v(y1)}, {v(y1 + 8)}')
            k.I(f'v_lshlrev_b32 {v(t0)}, 16, {v(U + 4 * ch + j)}')
            k.I(f'v_and_b32 {v(t1)}, 0xffff0000, {v(U + 4 * ch + j)}')
            k.I(f'v_lshlrev_b32 {v(t2)}, 16, {v(X + 4 * ch + j)}')
            k.I(f'v_and_b32 {v(t3)}, 0xffff0000, {v(X + 4 * ch + j)}')
            k.I(f'v_fma_f32 {v(y0)}, {v(t0)}, {dsk}, {v(y0)}')
            k.I(f'v_fma_f32 {v(y1)}, {v(t1)}, {dsk}, {v(y1)}')
            k.I(f'v_add_f32 {v(y0)}, {v(y0)}, {v(t2)}')
            k.I(f'v_add_f32 {v(y1)}, {v(y1)}, {v(t3)}')
            k.I(f'v_cvt_pk_bf16_f32 {v(O + 4 * ch + j)}, {v(y0)}, {v(y1)}')
        k.I(f'buffer_store_dwordx4 {v(O + 4 * ch, 4)}, v3, {W_}, {s(11 + ch)} offen sc1')
    st('cv:stored')


G_VX, G_VL = 3, 4
G_VT, G_VW = 12, (8, 9)
G_EB = 240
A_CS = 224


def glu_prep(k):
    k.M(f'''
    v_lshrrev_b32 v5, 4, v2
    v_and_b32 v6, 15, v2
    v_lshlrev_b32 v7, 2, v5
    v_xor_b32 v6, v6, v7
    v_lshlrev_b32 v6, 4, v6
    s_lshl_b32 s12, s6, 2
    v_add_u32 v7, s12, v5
    v_lshlrev_b32 v7, 12, v7
    v_add_u32 {v(G_VX)}, v6, v7
    v_lshlrev_b32 {v(G_VL)}, 4, v2
    v_lshrrev_b32 v16, 5, v2
    v_lshlrev_b32 v16, 3, v16
    v_bfe_u32 v17, v2, 2, 2
    v_add_u32 v16, v16, v17
    v_lshlrev_b32 v16, 8, v16
    v_bfe_u32 v18, v2, 4, 1
    v_lshlrev_b32 v18, 1, v18
    v_bfe_u32 v19, v2, 1, 1
    v_add_u32 v18, v18, v19
    v_add_u32 v18, s12, v18
    v_lshlrev_b32 v17, 2, v17
    v_xor_b32 v18, v18, v17
    v_lshl_add_u32 v16, v18, 4, v16
    v_and_b32 v19, 1, v2
    v_lshl_add_u32 {v(G_VT)}, v19, 3, v16
    v_add_u32 {v(G_VT)}, {XRING}, {v(G_VT)}
    v_add_u32 {v(G_VW[0])}, {WRING}, {v(G_VL)}
    v_add_u32 {v(G_VW[1])}, {WRING + 65536}, {v(G_VL)}
    s_mov_b32 s60, -1
    s_mov_b32 s61, 0
    v_mov_b32 {v(G_EB + 1)}, 0
    v_mov_b32 {v(G_EB + 2)}, 0
    v_mov_b32 {v(G_EB + 3)}, 0
    ''')


def glu_phase(k, st, stage):
    xin = XT1 if stage == 0 else XT3
    hp = HP[stage]
    W_ = f's[{WS}:{WS + 3}]'
    NFT, P1T = 7, 2
    WB = wblocks()
    blocks = [('X', j) for j in range(28)] + WB
    NB = len(blocks)
    bidx = {b: i for i, b in enumerate(blocks)}
    XN = 28
    epoch = {}
    for j in range(28): epoch[j] = j // 4
    for i in range(len(WB)):
        epoch[XN + i] = -1 if i < NWR_ else 7 + (i - NWR_) // 4
    k.M(f'''
    s_lshl_b32 s13, {s(S_RB)}, 8
    s_add_u32 s13, s13, {xin}
    v_mov_b32 v16, 0x3f803f80
    v_mov_b32 v17, 0
    v_mov_b32 v18, 0
    s_lshl_b32 s19, {s(S_RB)}, 2
    s_add_u32 s19, s19, s6
    s_mul_i32 s19, s19, {112 * 1024}
    s_mul_i32 s24, {s(S_FS)}, {NFT * 1024}
    s_add_u32 s19, s19, s24
    s_add_u32 s19, s19, {hp}
    ''')
    dma = {}
    nreads = {i: (2 if blocks[i][0] == 'X' else 4) for i in range(NB)}
    reads = {i: [] for i in range(NB)}
    stt = dict(nx=0, nw=NWR_, synced=-1, free=set())

    def dma_instrs(b):
        if b < XN:
            slot = b % NXR
            return [f's_add_u32 m0, {s(S_W1K)}, {XRING + slot * 4096}',
                    f's_add_u32 s18, s13, {b * 65536}',
                    f'buffer_load_dwordx4 {v(G_VX)}, {W_}, s18 offen lds']
        return w_dma(b - XN)

    def issue(b):
        for t in dma_instrs(b): h = k.I(t)
        dma[b] = h

    for b in range(NXR): issue(b)
    stt['nx'] = NXR
    if stage == 0:
        k.M(f'''
        v_and_b32 v5, 31, v2
        v_lshlrev_b32 v5, 2, v5
        s_mul_i32 s24, {s(S_FS)}, {NFT * 128}
        s_add_u32 s24, s24, {CSO}
        v_mov_b32 v6, 0
        ''')
        for t in range(NFT):
            k.I(f'buffer_load_dword {a(A_CS + 2 * t)}, v5, {W_}, s24 offen' + (f' offset:{t * 128}' if t else ''))
        for t in range(NFT): k.I(f'v_accvgpr_write_b32 {a(A_CS + 2 * t + 1)}, v6')
        k.I(f'v_accvgpr_write_b32 {a(A_CS + 14)}, v6')
        k.I(f'v_accvgpr_write_b32 {a(A_CS + 15)}, v6')

    ONES, S1, S2, C1, SD, TMP = 16, 17, 18, 19, 20, 21
    HO = [24, 28]
    XF = 32
    WR = 144
    NWR = 8
    ACC = [176, 192, 208, 224]

    fill = []
    isdma = lambda x: isinstance(x[1], tuple) and x[1][0] == 'dma'

    def try_queue_dma():
        new = []
        while stt['nx'] < XN and (stt['nx'] - NXR) in stt['free']:
            new.append((12, ('dma', stt['nx']))); stt['nx'] += 1
        while stt['nw'] < len(WB) and (XN + stt['nw'] - NWR_) in stt['free']:
            new.append((12, ('dma', XN + stt['nw']))); stt['nw'] += 1
        pos = sum(1 for x in fill if isdma(x))
        fill.sort(key=lambda x: 0 if isdma(x) else 1)
        fill[pos:pos] = new

    def flush_dma_for(e):
        i = 0
        while i < len(fill):
            it = fill[i][1]
            if isdma(fill[i]) and epoch[it[1]] <= e:
                issue(it[1]); fill.pop(i)
                print('   warning: late DMA', it[1])
            else:
                i += 1

    def sync(e):
        flush_dma_for(e)
        ops = [dma[b] for b in range(NB) if epoch[b] == e]
        k.barrier(vm_ops=ops, lg=False)
        stt['synced'] = e
        for b in range(NB):
            if len(reads[b]) == nreads[b] and not any(r in k.lgq for r in reads[b]):
                stt['free'].add(b)
        try_queue_dma()

    def rd(b, text):
        while epoch[b] > stt['synced']:
            sync(stt['synced'] + 1)
        reads[b].append(k.I(text))

    def rd_x(j):
        b = j
        for half in range(2):
            off = (b % NXR) * 4096 + half * 1024
            yield lambda b=b, off=off, half=half: rd(b, f'ds_read_b64_tr_b16 {v(XF + 4 * j + 2 * half, 2)}, {v(G_VT)} offset:{off}')

    wcount = [0]

    def rd_w(b, frag):
        r = WR + 4 * (wcount[0] % NWR)
        wcount[0] += 1
        a_ = ((b - XN) % NWR_) * 4096 + frag * 1024
        hi, off = a_ >> 16, a_ & 0xffff
        return r, (lambda: rd(b, f'ds_read_b128 {v(r, 4)}, {v(G_VW[hi])} offset:{off}'))

    def run_fill(budget):
        while fill and budget > 0:
            c, it = fill[0][:2]
            if c > budget + 4: break
            fill.pop(0)
            if isinstance(it, tuple):
                if it[0] == 'dma': issue(it[1])
                else:
                    for t in it[1]: k.I(t)
            else:
                k.I(it)
            budget -= c

    def mfma(acc, wr, xf, first):
        c = '0' if first else v(acc, 16)
        k.I(f'v_mfma_f32_32x32x16_bf16 {v(acc, 16)}, {v(wr, 4)}, {v(xf, 4)}, {c}')

    w2q = []
    if stage == 0:
        k.M(f'''
        s_lshl_b32 s26, {s(S_DT)}, 1
        s_lshr_b32 s27, s6, 1
        s_add_u32 s26, s26, s27
        s_xor_b32 s27, s26, 1
        s_mul_i32 s26, s26, {112 * 1024}
        s_mul_i32 s27, s27, {112 * 1024}
        s_mul_i32 s28, s6, {28 * 1024}
        s_add_u32 s28, s28, {W2P}
        s_add_u32 s26, s26, s28
        s_add_u32 s27, s27, s28
        ''')
        for s_ in range(28):
            for half in range(2):
                it = []
                if s_ % 4 == 0 and s_ > 0: it.append(f's_add_u32 s{26 + half}, s{26 + half}, 4096')
                off = (s_ % 4) * 1024
                it.append(f'buffer_load_dwordx4 {a(8 * s_ + 4 * half, 4)}, {v(G_VL)}, {W_}, s{26 + half} offen' + (f' offset:{off}' if off else ''))
                w2q.append((12, ('grp', it)))

    def w2_feed(n):
        for _ in range(n):
            if w2q: fill.append(w2q.pop(0))

    def group_reads(i):
        bP = bidx[('P', i)]
        th, wr = [], []
        xs = list(rd_x(2 * i)) + list(rd_x(2 * i + 1))
        for f in range(4):
            r, t = rd_w(bP, f)
            wr.append(r); th.append(t)
        order = [th[0], xs[0], xs[1], th[1], th[2], xs[2], xs[3], th[3]]
        return wr, order

    st('g:issued')
    wr_cur, th = group_reads(0)
    for t in th: t()
    st('g:first')
    p2 = []
    for t in range(P1T, NFT):
        for ks in range(28): p2.append((t, ks))
    p2regs = {}
    p2ptr = [0]

    def p2_read():
        if p2ptr[0] >= len(p2): return
        t, ks = p2[p2ptr[0]]
        p2ptr[0] += 1
        r, th_ = rd_w(bidx[('V', t, ks >> 2)], ks & 3)
        p2regs[(t, ks)] = r
        th_()

    W2_P1, W2_P2 = int(os.environ.get('W2_P1', 1)), int(os.environ.get('W2_P2', 9))
    for i in range(14):
        if i < 13:
            wr_nxt, th = group_reads(i + 1)
        else:
            wr_nxt, th = None, [p2_read] * 4
        if i >= 3: w2_feed(W2_P1)
        for m in range(4):
            ks = 2 * i + (m >> 1)
            mfma(ACC[m & 1], wr_cur[m], XF + 4 * ks, ks == 0)
            n = 2 if i < 13 else 1
            for _ in range(n): th.pop(0)()
            run_fill(24 - 8 * n)
        for ks in (2 * i, 2 * i + 1):
            for r in range(4):
                k.I(f'v_dot2c_f32_bf16 {v(S1)}, {v(XF + 4 * ks + r)}, {v(ONES)}')
                k.I(f'v_dot2c_f32_bf16 {v(S2)}, {v(XF + 4 * ks + r)}, {v(XF + 4 * ks + r)}')
        wr_cur = wr_nxt
    st('g:p1')
    c = f32hex(1.0 / D)
    fin = [f'v_mov_b32 {v(TMP)}, {v(S1)}', f'v_mov_b32 {v(TMP + 1)}, {v(S2)}',
           f'v_permlane32_swap_b32 {v(S1)}, {v(TMP)}', f'v_permlane32_swap_b32 {v(S2)}, {v(TMP + 1)}',
           f'v_add_f32 {v(S1)}, {v(S1)}, {v(TMP)}', f'v_add_f32 {v(S2)}, {v(S2)}, {v(TMP + 1)}',
           f'v_mul_f32 {v(S1)}, {c}, {v(S1)}', f'v_mul_f32 {v(S2)}, {c}, {v(S2)}',
           f'v_cvt_pk_bf16_f32 {v(TMP)}, -{v(S1)}, -{v(S1)}',
           f'v_cndmask_b32 {v(G_EB)}, 0, {v(TMP)}, s[60:61]',
           f'v_fma_f32 {v(S2)}, -{v(S1)}, {v(S1)}, {v(S2)}',
           f'v_max_f32 {v(S2)}, 0, {v(S2)}',
           f'v_cvt_pk_bf16_f32 {v(TMP)}, {v(S2)}, {v(S2)}',
           f'v_lshlrev_b32 {v(S2)}, 16, {v(TMP)}',
           f'v_add_f32 {v(S2)}, {f32hex(1e-5)}, {v(S2)}',
           f'v_cvt_pk_bf16_f32 {v(TMP)}, {v(S2)}, {v(S2)}',
           f'v_lshlrev_b32 {v(S2)}, 16, {v(TMP)}',
           f'v_sqrt_f32 {v(S2)}, {v(S2)}',
           f'v_cvt_pk_bf16_f32 {v(TMP)}, {v(S2)}, {v(S2)}',
           f'v_lshlrev_b32 {v(SD)}, 16, {v(TMP)}',
           f'v_rcp_f32 {v(C1)}, {v(SD)}',
           f'v_mul_f32 {v(C1)}, {f32hex(-LOG2E)}, {v(C1)}']
    for t in fin: fill.append((8 if ('sqrt' in t or 'rcp' in t) else 4, t))

    def ext(t):
        return f'v_mfma_f32_32x32x16_bf16 {v(ACC[t % 4], 16)}, {a(A_CS + 2 * t, 4)}, {v(G_EB, 4)}, {v(ACC[t % 4], 16)}'

    for t in range(P1T): fill.append((8, ext(t)))

    def epilogue(t):
        A = ACC[t % 4]
        ho = HO[t & 1]
        items = []
        for i in range(8): items.append((4, f'v_mul_f32 {v(A + i)}, {v(A + i)}, {v(C1)}'))
        for i in range(8): items.append((8, f'v_exp_f32 {v(A + i)}, {v(A + i)}'))
        for i in range(8): items.append((4, f'v_fma_f32 {v(A + i)}, {v(A + i)}, {v(SD)}, {v(SD)}'))
        for i in range(8): items.append((8, f'v_rcp_f32 {v(A + i)}, {v(A + i)}'))
        for i in range(8): items.append((4, f'v_mul_f32 {v(A + 8 + i)}, {v(A + 8 + i)}, {v(A + i)}'))
        for i in range(4): items.append((4, f'v_cvt_pk_bf16_f32 {v(ho + i)}, {v(A + 8 + 2 * i)}, {v(A + 9 + 2 * i)}'))
        items.append((4, f's_add_u32 s25, s19, {t * 1024}'))
        items.append((8, f'buffer_store_dwordx4 {v(ho, 4)}, {v(G_VL)}, {W_}, s25 offen sc1'))
        return [(c_, it, t) for c_, it in items]

    epi_done = set()
    for t in range(P1T): fill.extend(epilogue(t)); epi_done.add(t)
    PF = 5
    while p2ptr[0] < min(PF, len(p2)): p2_read()
    for n, (t, ks) in enumerate(p2):
        if ks == 0 and t >= 4:
            while any(len(x) > 2 and x[2] == t - 4 for x in fill):
                print('   warning: forced epilogue flush', t - 4)
                run_fill(1000)
        if ks == 3 and t - 1 >= P1T and (t - 1) not in epi_done:
            fill.extend(epilogue(t - 1)); epi_done.add(t - 1)
        if ks == 4 and t >= 3: w2_feed(W2_P2 + 2)
        if ks == 14 and t == 2: w2_feed(W2_P2)
        mfma(ACC[t % 4], p2regs[(t, ks)], XF + 4 * ks, ks == 0)
        if ks == 27: k.I(ext(t))
        p2_read()
        run_fill(16)
    st('g:p2')
    t = NFT - 1
    if t not in epi_done: fill.extend(epilogue(t))
    w2_feed(1000)
    while fill: run_fill(1000)
    st('g:end')


RES = T0
RED = T0 + 8192
D_RQ = 240
D_PF = int(os.environ.get('D_PF', 20))


def down_prep(k, stage):
    W_ = f's[{WS}:{WS + 3}]'
    xres = XT1 if stage == 0 else XT3
    k.M(f'''
    s_and_b32 s11, s6, 1
    s_lshr_b32 s12, s6, 1
    s_lshl_b32 s40, {s(S_LB)}, 1
    s_add_u32 s40, s40, s11
    s_lshl_b32 s41, {s(S_DT)}, 1
    s_add_u32 s41, s41, s12
    s_lshl_b32 s42, s41, 17
    s_lshl_b32 s43, s40, 6
    s_add_u32 s42, s42, s43
    s_add_u32 s43, s42, {xres}
    s_xor_b32 s45, s40, 1
    s_mul_i32 s44, s40, {112 * 1024}
    s_mul_i32 s45, s45, {112 * 1024}
    s_mul_i32 s46, s6, {28 * 1024}
    s_add_u32 s46, s46, {HP[stage]}
    s_add_u32 s44, s44, s46
    s_add_u32 s45, s45, s46
    s_lshl_b32 s47, s6, 11
    s_add_u32 s47, s47, {RES}
    ''')
    if stage == 0:
        k.M(f'''
        v_and_b32 v5, 31, v2
        v_lshrrev_b32 v6, 5, v2
        v_lshlrev_b32 v5, 12, v5
        v_lshl_add_u32 v5, v6, 4, v5
        buffer_load_dwordx4 {v(D_RQ, 4)}, v5, {W_}, s43 offen
        buffer_load_dwordx4 {v(D_RQ + 4, 4)}, v5, {W_}, s43 offen offset:32
        ''')
    else:
        k.M(f'''
        v_lshrrev_b32 v5, 2, v2
        v_and_b32 v6, 3, v2
        v_lshlrev_b32 v5, 12, v5
        v_lshl_add_u32 v5, v6, 4, v5
        s_mov_b32 m0, s47
        s_add_u32 s48, s43, 65536
        buffer_load_dwordx4 v5, {W_}, s43 offen lds
        s_add_u32 m0, s47, 1024
        buffer_load_dwordx4 v5, {W_}, s48 offen lds
        ''')


def down_phase(k, st, stage):
    W_ = f's[{WS}:{WS + 3}]'
    VL = 4
    PF = D_PF
    RING = 16
    ACCS = [176, 192, 208, 224]
    assert RING + 8 * PF <= 176
    RQ = D_RQ

    def acc(t): return v(ACCS[t], 16)

    def loads(s_):
        r = RING + 8 * (s_ % PF)
        if s_ % 4 == 0 and s_ > 0:
            for b in (44, 45): k.I(f's_add_u32 {s(b)}, {s(b)}, 4096')
        off = (s_ % 4) * 1024
        o = f' offset:{off}' if off else ''
        k.I(f'buffer_load_dwordx4 {v(r, 4)}, {v(VL)}, {W_}, s44 offen{o}')
        k.I(f'buffer_load_dwordx4 {v(r + 4, 4)}, {v(VL)}, {W_}, s45 offen{o}')

    for s_ in range(PF): loads(s_)
    st('d:issued')
    k.M(f'''
    v_lshrrev_b32 v5, 5, v2
    v_lshlrev_b32 v5, 2, v5
    v_bfe_u32 v6, v2, 2, 2
    v_add_u32 v5, v5, v6
    v_lshlrev_b32 v5, 6, v5
    v_bfe_u32 v6, v2, 4, 1
    v_lshl_add_u32 v5, v6, 5, v5
    v_and_b32 v6, 3, v2
    v_lshl_add_u32 v5, v6, 3, v5
    v_add_u32 v5, s47, v5
    ''')
    if stage == 0:
        for b in (0, 4):
            k.I(f'v_permlane32_swap_b32 {v(RQ + b)}, {v(RQ + b + 2)}')
            k.I(f'v_permlane32_swap_b32 {v(RQ + b + 1)}, {v(RQ + b + 3)}')
    else:
        for q in range(4):
            k.I(f'ds_read_b64_tr_b16 {v(RQ + 2 * q, 2)}, v5 offset:{q * 512}')
    WBR = [None, 8, 9, 10]
    for t in (1, 2, 3):
        k.I(f's_xor_b32 s52, s6, {t}')
        k.I(f's_mul_i32 s52, s52, {3 * 4096}')
        k.I(f's_add_u32 s52, s52, {RED + (t - 1) * 4096}')
        k.I(f'v_add_u32 {v(WBR[t])}, s52, {v(VL)}')
    k.I(f's_mul_i32 s52, s6, {3 * 4096}')
    k.I(f's_add_u32 s52, s52, {RED}')
    k.I(f'v_add_u32 v11, s52, {v(VL)}')
    for s_ in range(28):
        r = RING + 8 * (s_ % PF)
        hA, hB = v(r, 4), v(r + 4, 4)
        wA, wB = a(8 * s_, 4), a(8 * s_ + 4, 4)
        for tau, h_, w_ in ((0, hA, wA), (2, hA, wB), (1, hB, wA), (3, hB, wB)):
            c = '0' if s_ == 0 else acc(tau)
            A_, B_ = (h_, w_) if stage == 0 else (w_, h_)
            k.I(f'v_mfma_f32_32x32x16_bf16 {acc(tau)}, {A_}, {B_}, {c}')
        if s_ + PF < 28: loads(s_ + PF)
        if s_ == 0: st('d:first')
    st('d:mfma')
    for t in (1, 2, 3):
        for q in range(4):
            k.I(f'ds_write_b128 {v(WBR[t])}, {v(ACCS[t] + 4 * q, 4)} offset:{q * 1024}')
    U = RING
    for n in range(8):
        k.I(f'v_lshlrev_b32 {v(U + 2 * n)}, 16, {v(RQ + n)}')
        k.I(f'v_and_b32 {v(U + 2 * n + 1)}, 0xffff0000, {v(RQ + n)}')
    ACC0 = ACCS[0]
    for n in range(8):
        k.I(f'v_pk_add_f32 {v(ACC0 + 2 * n, 2)}, {v(ACC0 + 2 * n, 2)}, {v(U + 2 * n, 2)}')
    k.barrier()
    st('d:red')
    P = RING + 16
    for t in range(3):
        for q in range(4):
            k.I(f'ds_read_b128 {v(P + 16 * t + 4 * q, 4)}, v11 offset:{t * 4096 + q * 1024}')
    for t in range(3):
        for n in range(8):
            k.I(f'v_pk_add_f32 {v(ACC0 + 2 * n, 2)}, {v(ACC0 + 2 * n, 2)}, {v(P + 16 * t + 2 * n, 2)}')
    O = RING + 64
    for n in range(8):
        k.I(f'v_cvt_pk_bf16_f32 {v(O + n)}, {v(ACC0 + 2 * n)}, {v(ACC0 + 2 * n + 1)}')
    for b in (0, 4):
        k.I(f'v_permlane32_swap_b32 {v(O + b)}, {v(O + b + 2)}')
        k.I(f'v_permlane32_swap_b32 {v(O + b + 1)}, {v(O + b + 3)}')
    if stage == 0:
        k.M(f'''
        v_and_b32 v8, 31, v2
        v_lshrrev_b32 v6, 5, v2
        v_lshlrev_b32 v7, 12, v8
        v_lshl_add_u32 v7, v6, 4, v7
        s_add_u32 s43, s42, {XT2}
        buffer_store_dwordx4 {v(O, 4)}, v7, {W_}, s43 offen sc1
        buffer_store_dwordx4 {v(O + 4, 4)}, v7, {W_}, s43 offen offset:32 sc1
        v_lshlrev_b32 v9, 6, v8
        v_lshl_add_u32 v9, v6, 4, v9
        v_add_u32 v9, s47, v9
        ds_write_b128 v9, {v(O, 4)}
        ds_write_b128 v9, {v(O + 4, 4)} offset:32
        v_mov_b32 v9, 0x3f803f80
        v_mov_b32 v10, 0
        v_mov_b32 v11, 0
        v_lshrrev_b32 v12, 3, v8
        v_lshlrev_b32 v12, 7, v12
        v_lshl_add_u32 v12, v6, 5, v12
        v_and_b32 v13, 7, v2
        v_lshl_add_u32 v12, v13, 2, v12
        s_lshl_b32 s49, s40, 9
        s_add_u32 s49, s49, {ST3}
        ''')
        k.wait_all(vm=False)
        T = RING
        for q in range(4):
            k.I(f'ds_read_b64_tr_b16 {v(T + 2 * q, 2)}, v5 offset:{q * 512}')
        for n in range(8):
            k.I(f'v_dot2c_f32_bf16 v10, {v(T + n)}, v9')
            k.I(f'v_dot2c_f32_bf16 v11, {v(T + n)}, {v(T + n)}')
        k.I('v_permlane32_swap_b32 v10, v11')
        k.I('v_add_f32 v10, v10, v11')
        k.I(f'buffer_atomic_add_f32 v10, v12, {W_}, s49 offen sc1')
    else:
        srd(k, 24, P_OUT, L * D * 2)
        k.M(f'''
        v_and_b32 v8, 31, v2
        v_lshrrev_b32 v6, 5, v2
        v_mul_u32_u24 v7, 896, v8
        v_lshl_add_u32 v7, v6, 4, v7
        s_mul_i32 s48, s40, {32 * 896}
        s_lshl_b32 s49, s41, 6
        s_add_u32 s48, s48, s49
        buffer_store_dwordx4 {v(O, 4)}, v7, s[24:27], s48 offen
        buffer_store_dwordx4 {v(O + 4, 4)}, v7, s[24:27], s48 offen offset:32
        ''')
    st('d:stored')


def phase0_spare(k, st):
    W_ = f's[{WS}:{WS + 3}]'
    ln1_issue(k, 24)
    srd(k, 28, P_WG, D * F * 2)
    srd(k, 32, P_WU, D * F * 2)
    GB, UB = T0, T0 + 57344
    k.M(f'''
    s_sub_u32 s7, s2, {NCW}
    s_min_u32 s7, s7, 27
    v_lshrrev_b32 v5, 3, v2
    v_and_b32 v6, 7, v2
    v_and_b32 v7, 3, v5
    v_lshlrev_b32 v7, 1, v7
    v_xor_b32 v6, v6, v7
    v_mul_u32_u24 v5, 3584, v5
    v_lshl_add_u32 v3, v6, 4, v5
    v_xor_b32 v6, 2, v6
    v_lshl_add_u32 v4, v6, 4, v5
    s_lshl_b32 s12, s7, 7
    s_mul_i32 s9, s6, {14 * 8 * 3584}
    s_add_u32 s12, s12, s9
    s_mul_i32 s13, s6, {14 * 1024}
    ''')
    k.I('s_waitcnt lgkmcnt(0)')
    token(k)
    ln1_finish(k)
    own = list(k.vmq)
    st('s0:ln1')
    for i in range(14):
        k.I(f's_add_u32 s10, s12, {i * 8 * 3584}')
        k.I(f's_add_u32 m0, s13, {GB + i * 1024}')
        k.I('buffer_load_dwordx4 v3, s[28:31], s10 offen lds')
        k.I(f's_add_u32 m0, s13, {UB + i * 1024}')
        k.I('buffer_load_dwordx4 v4, s[32:35], s10 offen lds')
    k.wait_op(*own)
    k.I('s_barrier')
    wave0(k, lambda: emit_signal(k, 1, True))
    st('s0:sig1')
    k.wait_all()
    k.I('s_barrier')
    st('s0:dma')
    k.I('s_sub_u32 s7, s2, %d' % NCW)
    k.I('s_min_u32 s7, s7, 27')
    k.M(f'''
    v_bfe_u32 v5, v2, 2, 2
    v_lshrrev_b32 v6, 5, v2
    v_lshl_add_u32 v6, v6, 3, v5
    v_lshlrev_b32 v6, 7, v6
    v_bfe_u32 v7, v2, 1, 1
    s_lshl_b32 s8, s6, 1
    v_add_u32 v7, s8, v7
    v_lshlrev_b32 v8, 1, v5
    v_xor_b32 v7, v7, v8
    v_bfe_u32 v8, v2, 4, 1
    v_lshlrev_b32 v9, 1, v8
    v_xor_b32 v7, v7, v9
    v_lshl_add_u32 v6, v7, 4, v6
    v_and_b32 v7, 1, v2
    v_lshl_add_u32 v6, v7, 3, v6
    v_mul_u32_u24 v8, 57344, v8
    v_add_u32 v6, v6, v8
    v_add_u32 v6, {GB}, v6
    v_mov_b32 v10, 0x3f803f80
    v_mov_b32 v11, 0
    ''')
    XF = 32
    for ks in range(28):
        k.I(f'ds_read_b64_tr_b16 {v(XF + 4 * ks, 2)}, v6 offset:{ks * 2048}')
        k.I(f'ds_read_b64_tr_b16 {v(XF + 4 * ks + 2, 2)}, v6 offset:{ks * 2048 + 512}')
        if ks >= 3:
            for r in range(4): k.I(f'v_dot2c_f32_bf16 v11, {v(XF + 4 * (ks - 3) + r)}, v10')
    for ks in range(25, 28):
        for r in range(4): k.I(f'v_dot2c_f32_bf16 v11, {v(XF + 4 * ks + r)}, v10')
    k.M(f'''
    v_mov_b32 v14, v11
    v_permlane32_swap_b32 v11, v14
    v_add_f32 v11, v11, v14
    v_cvt_pk_bf16_f32 v14, v11, v11
    v_lshlrev_b32 v14, 16, v14
    v_sub_f32 v14, v11, v14
    v_cvt_pk_bf16_f32 v14, v11, v14
    v_lshlrev_b32 v9, 2, v2
    s_lshl_b32 s8, s7, 2
    s_add_u32 s8, s8, s6
    s_lshl_b32 s8, s8, 7
    s_add_u32 s8, s8, {CSO}
    s_mov_b32 exec_hi, 0
    buffer_store_dword v14, v9, {W_}, s8 offen sc1
    s_mov_b32 exec_hi, -1
    ''')
    st('s0:sums')


def w_prefetch(k):
    k.I('v_lshlrev_b32 v4, 4, v2')
    for b in range(NWR_):
        for t in w_dma(b): k.I(t)


def join(k, lab):
    k.raw(lab + ':')
    k.reset_state()
    k.I('s_nop 7')


def build(out):
    label = NAME + '_kernel'
    k = Asm()
    st = Stamps(k)
    kernel_header(k, label)
    prologue(k, 'mega', st)
    k.I(f's_cmp_ge_u32 s2, {NCW}')
    k.I('s_cbranch_scc1 L_SPARE0')
    phase0_conv(k, st)
    conv_prep(k, 0)
    handoff(k, st, None, 1, first=True, name='h1', pre=True)
    conv_phase(k, st, 0)
    glu_prep(k)
    handoff(k, st, 2, 2, name='h2')
    k.I('s_branch L_GLU1')
    k.raw('L_SPARE0:')
    k.reset_state()
    st2 = Stamps(k); st2.n = 48
    if STAMP:
        k.I('s_waitcnt lgkmcnt(0)')
        k.I(f'v_writelane_b32 {v(VSTAMP)}, s64, 0')
        k.I(f'v_writelane_b32 {v(VSTAMP)}, s66, 1')
    phase0_spare(k, st2)
    handoff(k, st2, 2, 1, first=True, name='s1')
    w_prefetch(k)
    glu_prep(k)
    handoff(k, st2, None, 2, name='s2')
    join(k, 'L_GLU1')
    glu_phase(k, st, 0)
    k.I(f's_cmp_ge_u32 s2, {NCW}')
    k.I('s_cbranch_scc1 L_SPARE1')
    vq = list(k.vmq)
    down_prep(k, 0)
    handoff(k, st, 3, 3, narrow=True, name='h3')
    down_phase(k, st, 0)
    conv_prep(k, 1)
    handoff(k, st, 4, 4, name='h4')
    conv_phase(k, st, 1)
    glu_prep(k)
    handoff(k, st, 5, 5, name='h5')
    k.I('s_branch L_GLU2')
    k.raw('L_SPARE1:')
    k.reset_state()
    k.I('s_waitcnt vmcnt(0) lgkmcnt(0)')
    st3 = Stamps(k); st3.n = 48 + len(st2.names)
    handoff(k, st3, 5, 5, name='s5', after_sig=lambda: (w_prefetch(k), glu_prep(k), k.wait_all()))
    join(k, 'L_GLU2')
    glu_phase(k, st, 1)
    k.I(f's_cmp_ge_u32 s2, {NCW}')
    k.I('s_cbranch_scc1 L_SPARE2')
    down_prep(k, 1)
    handoff(k, st, 6, 6, narrow=True, name='h6')
    down_phase(k, st, 1)
    k.I('s_cmp_lg_u32 s2, 0')
    k.I('s_cbranch_scc1 L_END')
    k.I('s_cmp_lg_u32 s6, 0')
    k.I('s_cbranch_scc1 L_END')
    k.M(f'''
    s_add_u32 s8, {s(S_GEN)}, 1
    v_mov_b32 v8, s8
    v_mov_b32 v9, 0
    s_mov_b64 exec, 1
    s_mov_b32 s9, {GEN}
    buffer_store_dword v8, v9, s[{WS}:{WS + 3}], s9 offen sc1
    s_mov_b64 exec, -1
    s_branch L_END
    ''')
    k.raw('L_SPARE2:')
    k.reset_state()
    k.I('s_waitcnt vmcnt(0) lgkmcnt(0)')
    st4 = lambda *a_, **b_: None
    st4.flush = lambda: None
    st4.names = []
    handoff(k, st4, 6, None, name='s6')
    k.raw('L_END:')
    k.reset_state()
    if STAMP:
        k.I('s_waitcnt vmcnt(0) lgkmcnt(0)')
        st('end'); st.flush()
        k.I('s_cmp_lg_u32 s6, %d' % int(os.environ.get('STAMP_WAVE', 0)))
        k.I('s_cbranch_scc1 L_END2')
        k.I('v_lshlrev_b32 v8, 2, v2')
        k.I('s_lshl_b32 s8, s2, 8')
        k.I(f's_add_u32 s8, s8, {DBGR}')
        k.I(f'buffer_store_dword {v(VSTAMP)}, v8, s[{WS}:{WS + 3}], s8 offen')
        k.raw('L_END2:')
        print('stamps:', list(enumerate(st.names)))
        print('spare stamps:', [(48 + i, n) for i, n in enumerate(st2.names)], [(62 + i, n) for i, n in enumerate(st3.names)])
        import json; json.dump(st.names + [''] * (48 - len(st.names)) + st2.names + st3.names + st4.names, open(out + '.names', 'w'))
    if DBGF:
        k.I('s_waitcnt vmcnt(0) lgkmcnt(0)')
        k.I('s_cmp_lg_u32 s6, 0')
        k.I('s_cbranch_scc1 L_END3')
        k.I(f's_load_dwordx2 s[4:5], s[0:1], {KA["dbg"]}')
        k.wait_all()
        srd(k, 24, 4, 256)
        k.M(f'''
        s_and_b32 s8, {s(S_GEN)}, 15
        s_lshl_b32 s9, s63, 4
        s_or_b32 s8, s8, s9
        v_mov_b32 v8, s8
        v_mov_b32 v9, s2
        s_mov_b64 exec, 1
        buffer_store_byte v8, v9, s[24:27], 0 offen
        ''')
        k.raw('L_END3:')
    k.I('s_endpgm')
    hdr = open('cdna_kernels/' + NAME + '.s.ref').read().split('; Override launch')[0]
    txt = hdr
    txt += f'; @launch kernel={label} grid=({NWG},1,1) block=(256,1,1) lds={LDS_TOTAL}\n'
    txt += '.amdgcn_target "amdgcn-amd-amdhsa--gfx950"\n.text\n'
    txt += k.text()
    txt += '.section .rodata,"a"\n.p2align 6\n' + kernel_desc(label, 512, 256)
    open(out, 'w').write(txt)
    print('instructions', k.nins, 'bytes', len(txt), k.stats)


if __name__ == '__main__':
    build(sys.argv[1] if len(sys.argv) > 1 else 'mg.s')
```
